```python
import torch

def _softmax(x, axis=-1):
    return torch.softmax(x, dim=axis)
def _gelu(x):
    return torch.nn.functional.gelu(x, approximate="tanh")
def _silu(x):
    return torch.nn.functional.silu(x)
def _sigmoid(x):
    return torch.sigmoid(x)
def _layernorm(x, axis=-1, eps=1e-5):
    m = x.mean(dim=axis, keepdim=True)
    v = x.var(dim=axis, keepdim=True, unbiased=False)
    return (x - m) / torch.sqrt(v + eps)
def _scatter_add(tgt, idx, src, axis=0):
    return tgt.clone().index_add_(axis, idx, src)
def _segment_sum(src, seg, n):
    out = torch.zeros((n,) + src.shape[1:], dtype=src.dtype)
    return out.index_add_(0, seg, src)
def _pad(x, pw):
    flat = tuple(v for pair in reversed(pw) for v in pair)
    return torch.nn.functional.pad(x, flat)

kernel_name = 'standalone__adm_resblock__diffusion'

def setup_inputs():

    _w = (lambda a: (lambda t: t.to(torch.bfloat16) if t.is_floating_point() else t)(torch.as_tensor(a)))
    B, C, HW, E = 2, 128, 128, 1152
    sc = (9.0 * C) ** -0.5
    return {
        "x": _w((lambda *s: torch.randn(*s, dtype=torch.bfloat16) * 0.05)(B, C, HW, HW)),
        "t_emb": _w((lambda *s: torch.randn(*s, dtype=torch.bfloat16) * 0.4)(B, E)),
        "g1": _w(1.0 + 0.1 * (lambda *s: torch.randn(*s, dtype=torch.bfloat16) * 0.4)(C)),
        "be1": _w(0.1 * (lambda *s: torch.randn(*s, dtype=torch.bfloat16) * 0.4)(C)),
        "w1": _w((lambda *s: torch.randn(*s, dtype=torch.bfloat16) * 0.4)(C, C, 3, 3) * sc),
        "w_emb": _w((lambda *s: torch.randn(*s, dtype=torch.bfloat16) * 0.4)(E, C) * (E ** -0.5)),
        "g2": _w(1.0 + 0.1 * (lambda *s: torch.randn(*s, dtype=torch.bfloat16) * 0.4)(C)),
        "be2": _w(0.1 * (lambda *s: torch.randn(*s, dtype=torch.bfloat16) * 0.4)(C)),
        "w2": _w((lambda *s: torch.randn(*s, dtype=torch.bfloat16) * 0.4)(C, C, 3, 3) * sc),
    }

def reference(x, t_emb, g1, be1, w1, w_emb, g2, be2, w2):
    B, C, H, W = x.shape
    G, eps = 4, 1e-5
    def gn(z, gamma, beta):
        zr = z.reshape(B, G, (C // G) * H * W)
        mu = zr.mean(-1).reshape(B, G, 1)
        var = ((zr - mu) ** 2).mean(-1).reshape(B, G, 1)
        zn = ((zr - mu) / torch.sqrt(var + eps)).reshape(B, C, H, W)
        return zn * gamma.reshape(1, C, 1, 1) + beta.reshape(1, C, 1, 1)
    def conv3(z, w):
        zp = _pad(z, ((0, 0), (0, 0), (1, 1), (1, 1)))
        taps = [torch.einsum("bchw,oc->bohw", zp[:, :, i:i+H, j:j+W], w[:, :, i, j]) for i in range(3) for j in range(3)]
        out = taps[0]
        for t in taps[1:]:
            out = out + t
        return out
    h = conv3(_silu(gn(x, g1, be1)), w1)
    emb = _silu(t_emb) @ w_emb
    h = h + emb.reshape(B, C, 1, 1)
    h = conv3(_silu(gn(h, g2, be2)), w2)
    return x + h
```

```python
import re

TRANS = ("v_exp_f32","v_log_f32","v_rcp_f32","v_rsq_f32","v_sqrt_f32","v_sin_f32","v_cos_f32",
         "v_exp_f16","v_rcp_f16","v_rcp_iflag_f32","v_log_f16","v_rsq_f16","v_sqrt_f16")

def regs_of(tok):
    tok = tok.strip()
    neg = tok.lstrip("-|").rstrip("|")
    if neg.startswith("abs(") and neg.endswith(")"):
        neg = neg[4:-1]
    m = re.fullmatch(r"([vas])(\d+)", neg)
    if m: return {(m.group(1), int(m.group(2)))}
    m = re.fullmatch(r"([vas])\[(\d+):(\d+)\]", neg)
    if m: return {(m.group(1), i) for i in range(int(m.group(2)), int(m.group(3))+1)}
    if neg == "vcc": return {("s",106),("s",107)}
    if neg == "vcc_lo": return {("s",106)}
    if neg == "vcc_hi": return {("s",107)}
    if neg == "exec": return {("s",126),("s",127)}
    if neg == "m0": return {("s",124)}
    return set()

class Ins:
    __slots__=("text","op","ops","mods","defs","uses","kind","passes","dpp","srcc","store_data")
    def __init__(self, text):
        self.text = text
        t = text.split(";")[0].strip()
        self.op = ""; self.ops=[]; self.mods=""; self.defs=set(); self.uses=set(); self.kind="other"
        self.passes=0; self.dpp=False; self.srcc=set(); self.store_data=set()
        if not t or t.endswith(":") or t.startswith("."):
            self.kind="label" if t.endswith(":") else "none"; return
        parts = t.split(None,1)
        self.op = op = parts[0]
        rest = parts[1] if len(parts)>1 else ""
        ops=[]; cur=""; depth=0
        for ch in rest:
            if ch=="[": depth+=1
            if ch=="]": depth-=1
            if ch=="," and depth==0:
                ops.append(cur.strip()); cur=""
            else: cur+=ch
        if cur.strip(): ops.append(cur.strip())
        if ops:
            last = ops[-1].split()
            ops[-1] = last[0]
            self.mods = " ".join(last[1:])
        self.ops = ops
        R = [regs_of(o) for o in ops]
        if op.startswith("v_mfma"):
            self.kind="mfma"
            self.passes = 8 if "32x32" in op else 4
            self.defs=R[0]; self.uses=R[1]|R[2]|R[3]; self.srcc=R[3]
        elif op.startswith("v_"):
            self.kind="trans" if any(op.startswith(x) for x in TRANS) else "valu"
            self.dpp = any(k in self.mods for k in ("row_","quad_perm","wave_","row_bcast","bank_mask"))
            if op.startswith("v_cmp"):
                self.defs=set(R[0]); self.uses=set().union(*R[1:]) if len(R)>1 else set()
                if op.startswith("v_cmpx"): self.defs |= regs_of("exec")
            elif op.startswith("v_permlane") and "swap" in op:
                self.kind="permlane"; self.defs=R[0]|R[1]; self.uses=R[0]|R[1]
            elif op.startswith(("v_readfirstlane","v_readlane")):
                self.kind="readlane"; self.defs=R[0]; self.uses=set().union(*R[1:])
            elif op.startswith(("v_add_co","v_sub_co","v_addc_co","v_subb_co","v_subrev_co")):
                self.defs=R[0]|R[1]; self.uses=set().union(*R[2:])
            else:
                self.defs=set(R[0]); self.uses=set().union(*R[1:]) if len(R)>1 else set()
                if op.startswith(("v_fmac","v_pk_fmac","v_dot2c","v_dot4c","v_writelane")) or self.dpp or "dst_unused:UNUSED_PRESERVE" in self.mods:
                    self.uses |= R[0]
                if op.startswith("v_cndmask") and len(ops)==3:
                    self.uses |= regs_of("vcc")
        elif op.startswith(("buffer_load","global_load","flat_load")):
            self.kind="vmem"
            if "lds" in self.mods.split() or "_lds_" in op:
                self.uses=set().union(*R) | regs_of("m0")
            else:
                self.defs=set(R[0]); self.uses=set().union(*R[1:])
        elif op.startswith(("buffer_store","buffer_atomic")):
            self.kind="vmem"; self.uses=set().union(*R)
            if "x3" in op or "x4" in op: self.store_data=set(R[0])
        elif op.startswith(("global_store","global_atomic")):
            self.kind="vmem"; self.uses=set().union(*R)
            if "x3" in op or "x4" in op: self.store_data=set(R[1])
        elif op.startswith("buffer_"):
            self.kind="vmem"
        elif op.startswith("ds_"):
            self.kind="ds"
            if op.startswith(("ds_read","ds_bpermute","ds_permute","ds_swizzle")):
                self.defs=set(R[0]); self.uses=set().union(*R[1:])
            else:
                self.uses=set().union(*R)
        elif op.startswith("s_"):
            self.kind="salu"
            if op.startswith(("s_cmp","s_cbranch","s_branch","s_waitcnt","s_barrier","s_nop","s_endpgm","s_sleep","s_setprio","s_bitcmp")):
                self.uses=set().union(*R) if R else set()
            elif op.startswith(("s_load","s_buffer_load","s_memtime","s_memrealtime","s_getpc")):
                self.defs=set(R[0]); self.uses=set().union(*R[1:]) if len(R)>1 else set()
            else:
                self.defs=set(R[0]) if R else set(); self.uses=set().union(*R[1:]) if len(R)>1 else set()
                if "saveexec" in op: self.defs |= regs_of("exec"); self.uses |= regs_of("exec")
    def states(self):
        if self.kind in ("label","none"): return 0
        if self.op=="s_nop": return int(self.ops[0],0)+1
        return 1

def required(prev, cur):
    need=0
    isv = lambda s:{r for r in s if r[0] in "va"}
    iss = lambda s:{r for r in s if r[0]=="s"}
    pv = prev.kind in ("valu","trans","permlane","readlane")
    cv = cur.kind in ("valu","trans","permlane","readlane")
    if pv:
        wv = isv(prev.defs); ws = iss(prev.defs)
        if wv:
            if cur.kind=="mfma" and wv & cur.uses: need=max(need,2)
            if cur.kind=="permlane" and wv & cur.uses: need=max(need,2)
            if cv and cur.dpp and wv & cur.uses: need=max(need,2)
            if cur.kind=="readlane" and wv & cur.uses: need=max(need,1)
            if prev.kind=="trans" and cv and cur.kind!="trans" and wv & cur.uses: need=max(need,1)
            if prev.kind=="trans" and cur.kind=="trans" and wv & cur.uses: need=max(need,1)
            if ("sdwa" in prev.text or "op_sel" in prev.mods and not prev.op.startswith("v_pk")) and cv and wv & (cur.uses|cur.defs): need=max(need,1)
        if ws:
            if cv and ws & cur.uses: need=max(need, 4 if cur.kind=="readlane" else 2)
            if cur.kind=="vmem" and ws & cur.uses: need=max(need,5)
            if cur.kind=="salu" and ws & cur.uses: need=max(need,2)
            if ws & regs_of("exec"):
                if cur.kind=="mfma": need=max(need,4)
                if cv and cur.dpp: need=max(need,5)
                if cur.kind in ("readlane","permlane"): need=max(need,4)
    if prev.kind=="mfma":
        p=prev.passes
        big = {4:8,8:12}[p]; ovl={4:6,8:10}[p]; war={4:3,8:7}[p]
        D=prev.defs
        if cur.kind=="mfma":
            ab = regs_of(cur.ops[1])|regs_of(cur.ops[2])
            if D & ab: need=max(need,big)
            if D & cur.srcc:
                if not (cur.srcc==D and cur.passes==p): need=max(need,ovl)
            if D & cur.defs and not (cur.defs==D and cur.srcc==D and cur.passes==p):
                need=max(need,ovl)
        elif cv:
            if D & (cur.uses|cur.defs): need=max(need,big)
            if prev.srcc & cur.defs: need=max(need,war)
        elif cur.kind in ("vmem","ds"):
            if D & (cur.uses|cur.defs): need=max(need,big)
    if prev.op.startswith("v_dot"):
        D=prev.defs
        if cur.op==prev.op:
            ab=set().union(*[regs_of(o) for o in cur.ops[1:3]])
            if D & ab: need=max(need,3)
        elif (cv or cur.kind in ("vmem","ds","mfma")) and D & (cur.uses|cur.defs): need=max(need,3)
    if prev.store_data:
        if cv and prev.store_data & cur.defs: need=max(need,2)
        elif prev.store_data & cur.defs: need=max(need,1)
    if prev.kind=="salu" and ("s",124) in prev.defs:
        if cur.kind=="vmem" and ("s",124) in cur.uses: need=max(need,1)
    return need

def fix_hazards(lines, report=False):
    out=[]; hist=[]
    n_ins=0
    for ln in lines:
        cur=Ins(ln)
        if cur.kind in ("label","none"):
            out.append(ln); continue
        dist=0; pad=0
        for prev in reversed(hist):
            r=required(prev,cur)
            if r>dist: pad=max(pad,r-dist)
            dist+=prev.states()
            if dist>=20: break
        if pad>0:
            nop=f"    s_nop {pad-1}"
            if report: print("hazard pad",pad,"before:",ln.strip())
            out.append(nop); hist.append(Ins(nop)); n_ins+=1
        out.append(ln); hist.append(cur)
        if len(hist)>64: hist=hist[-32:]
    return out

def check_seq(lines):
    bad=[]; hist=[]
    for ln in lines:
        cur=Ins(ln)
        if cur.kind in ("label","none"): continue
        dist=0
        for prev in reversed(hist):
            r=required(prev,cur)
            if r>dist: bad.append((prev.text.strip(),cur.text.strip(),r,dist))
            dist+=prev.states()
            if dist>=20: break
        hist.append(cur)
        if len(hist)>64: hist=hist[-32:]
    return bad

class Asm:
    def __init__(self):
        self.L=[]
    def __call__(self, s=""):
        for ln in s.split("\n"):
            t=ln.strip()
            if not t: continue
            if t.endswith(":") or t.startswith("."): self.L.append(t)
            else: self.L.append("    "+t)
    def label(self,n): self.L.append(n+":")
    def nop(self,n): self.L.append(f"    s_nop {n-1}")

def v(n,c=1): return f"v{n}" if c==1 else f"v[{n}:{n+c-1}]"
def a(n,c=1): return f"a{n}" if c==1 else f"a[{n}:{n+c-1}]"
def s(n,c=1): return f"s{n}" if c==1 else f"s[{n}:{n+c-1}]"

def magic(d, maxn):
    for sh in range(8,24):
        m = -(-(1<<sh)//d)
        if all(((n*m)>>sh)==n//d for n in range(maxn+1)) and maxn*m < (1<<31):
            return m,sh
    raise ValueError
```

```python
import sys
sys.path.insert(0, "tools")
from asmlib import *

WS_STATS1 = 0x0
WS_EMB    = 0x1000
WS_STATS2 = 0x2000
WS_W1F    = 0x10000
WS_W2F    = 0x60000
WS_LOW    = 0x100000
WS_H      = 0x100000
NX = 2*128*128*128*2
WBYTES = 294912
PP = 3264
ROWP = 544
NEG_LOG2E = 0xBFB8AA3B
INV_N = 1.0/524288.0
def fhex(f):
    import struct
    return "0x%08x" % struct.unpack("<I", struct.pack("<f", f))[0]

def srd(A, r, lo, hi, size, off=None):
    if off is None:
        A(f"s_mov_b32 s{r}, s{lo}")
        A(f"s_mov_b32 s{r+1}, s{hi}")
    else:
        A(f"s_add_u32 s{r}, s{lo}, {off}")
        A(f"s_addc_u32 s{r+1}, s{hi}, 0")
    A(f"s_mov_b32 s{r+2}, {size}")
    A(f"s_mov_b32 s{r+3}, 0x20000")

def row_allreduce(A, regs):
    for sh in (8,4,2,1):
        for r in regs:
            A(f"v_add_f32_dpp v{r}, v{r}, v{r} row_ror:{sh} row_mask:0xf bank_mask:0xf")

def swap_add(A, regs, tmps, which):
    for r,t in zip(regs,tmps):
        A(f"v_mov_b32 v{t}, v{r}")
    for r,t in zip(regs,tmps):
        A(f"v_permlane{which}_swap_b32 v{r}, v{t}")
    for r,t in zip(regs,tmps):
        A(f"v_add_f32 v{r}, v{r}, v{t}")

def kdesc(name, vg, acc):
    return f"""
.section .rodata,"a"
.p2align 6
.amdhsa_kernel {name}
  .amdhsa_next_free_vgpr {vg}
  .amdhsa_next_free_sgpr 102
  .amdhsa_accum_offset {acc}
  .amdhsa_group_segment_fixed_size 0
  .amdhsa_kernarg_size 96
  .amdhsa_user_sgpr_count 2
  .amdhsa_user_sgpr_kernarg_segment_ptr 1
  .amdhsa_system_sgpr_workgroup_id_x 1
  .amdhsa_float_denorm_mode_32 3
.end_amdhsa_kernel
.text
"""

def khead(A, name):
    A(f".globl {name}")
    A(".p2align 8")
    A(f".type {name},@function")
    A.label(name)

def gen_k1():
    A = Asm()
    name = "prep_kernel"
    khead(A, name)
    A(f"""
    s_cmp_ge_u32 s2, 256
    s_cbranch_scc1 L_k1_end
    s_load_dwordx4 s[4:7], s[0:1], 0
    s_load_dwordx4 s[8:11], s[0:1], 32
    s_load_dwordx2 s[12:13], s[0:1], 64
    s_load_dwordx2 s[14:15], s[0:1], 88
    v_lshrrev_b32 v1, 6, v0
    v_lshlrev_b32 v2, 4, v0
    v_readfirstlane_b32 s36, v1
    s_lshl_b32 s3, s2, 15
    s_waitcnt lgkmcnt(0)
    """)
    A("s_add_u32 s16, s4, s3"); A("s_addc_u32 s17, s5, 0"); A("s_mov_b32 s18, 32768"); A("s_mov_b32 s19, 0x20000")
    for j in range(1,8): A(f"s_mov_b32 s{40+j}, {4096*j}")
    A("buffer_load_dwordx4 v[16:19], v2, s[16:19], 0 offen")
    for j in range(1,8):
        A(f"buffer_load_dwordx4 v[{16+4*j}:{19+4*j}], v2, s[16:19], s{40+j} offen")
    A("s_cmp_ge_u32 s36, 2")
    A("s_cselect_b32 s20, s12, s8"); A("s_cselect_b32 s21, s13, s9")
    A(f"s_mov_b32 s22, {WBYTES}"); A("s_mov_b32 s23, 0x20000")
    A(f"s_mov_b32 s37, {WS_W1F}")
    A(f"s_cselect_b32 s37, {WS_W2F}, s37")
    m9,s9 = magic(9,127); m3,s3_ = magic(3,15)
    A(f"""
    v_and_b32 v3, 127, v0
    v_mul_u32_u24 v4, {m9}, v3
    v_lshrrev_b32 v4, {s9}, v4          ; osub
    v_mul_u32_u24 v5, 9, v4
    v_sub_u32 v5, v3, v5                ; tap
    v_mul_u32_u24 v6, {m3}, v5
    v_lshrrev_b32 v6, {s3_}, v6         ; dy
    v_mul_u32_u24 v7, 3, v6
    v_sub_u32 v7, v5, v7                ; dx
    s_lshr_b32 s38, s2, 4               ; o-octet
    s_and_b32 s39, s2, 15               ; c-octet
    s_mul_i32 s48, s38, {8*2304}
    s_mul_i32 s49, s39, {8*18}
    s_add_u32 s48, s48, s49
    v_mul_u32_u24 v8, 2304, v4
    v_lshl_add_u32 v8, v5, 1, v8
    v_add_u32 v8, s48, v8
    v_mov_b32 v9, 0x7ffffff0
    v_cmp_gt_u32 vcc, 72, v3
    """)
    A("v_cndmask_b32 v8, v9, v8, vcc")
    for j in range(8):
        A(f"buffer_load_ushort v{48+j}, v8, s[20:23], 0 offen offset:{18*j}")
    A(f"""
    s_lshr_b32 s48, s2, 6               ; w
    s_mul_i32 s48, s48, 72
    s_lshr_b32 s49, s39, 1              ; kc
    s_mul_i32 s49, s49, 9
    s_add_u32 s48, s48, s49
    s_lshl_b32 s48, s48, 10
    s_and_b32 s49, s38, 3
    s_lshl_b32 s49, s49, 7              ; 8*(oo&3)*16
    s_add_u32 s48, s48, s49
    s_and_b32 s49, s2, 1
    s_lshl_b32 s49, s49, 9              ; 32*16
    s_add_u32 s48, s48, s49
    s_add_u32 s48, s48, s37
    v_mul_u32_u24 v10, 3, v7
    v_add_u32 v10, v10, v6
    v_lshlrev_b32 v10, 10, v10
    v_lshl_add_u32 v10, v4, 4, v10
    v_add_u32 v10, s48, v10
    v_cndmask_b32 v10, v9, v10, vcc
    """)
    A(f"""
    s_lshr_b32 s50, s2, 7               ; b
    s_mul_i32 s51, s50, 2304
    s_add_u32 s24, s6, s51
    s_addc_u32 s25, s7, 0
    s_mov_b32 s26, 2304
    s_mov_b32 s27, 0x20000
    s_mov_b32 s28, s10
    s_mov_b32 s29, s11
    s_mov_b32 s30, {WBYTES}
    s_mov_b32 s31, 0x20000
    s_and_b32 s52, s2, 127
    s_lshl_b32 s52, s52, 1
    v_lshlrev_b32 v11, 1, v0
    v_lshlrev_b32 v12, 8, v0
    v_add_u32 v12, s52, v12
    """)
    for j in range(5):
        A(f"buffer_load_short_d16_hi v{60+j}, v11, s[24:27], 0 offen offset:{512*j}")
    A("buffer_load_short_d16_hi v65, v12, s[28:31], 0 offen")
    for j in range(1,5):
        A(f"s_mov_b32 s{52+j}, {65536*j}")
        A(f"buffer_load_short_d16_hi v{65+j}, v12, s[28:31], s{52+j} offen")
    srd(A, 32, 14, 15, WS_LOW)
    A("v_mov_b32 v13, 0x3f803f80")
    for r in (70,71,72,73): A(f"v_mov_b32 v{r}, 0")
    for j in range(8):
        A(f"s_waitcnt vmcnt({18+7-j})")
        for d in range(4):
            r = 16+4*j+d
            A(f"v_dot2_f32_bf16 v{70+(d&1)}, v{r}, v13, v{70+(d&1)}")
            A(f"v_dot2_f32_bf16 v{72+(d&1)}, v{r}, v{r}, v{72+(d&1)}")
    A("s_waitcnt vmcnt(10)")
    for j in range(4):
        A(f"v_lshl_or_b32 v{56+j}, v{49+2*j}, 16, v{48+2*j}")
    A("buffer_store_dwordx4 v[56:59], v10, s[32:35], 0 offen")
    A("v_add_f32 v70, v70, v71")
    A("v_add_f32 v72, v72, v73")
    A("s_waitcnt vmcnt(1)")
    A(f"s_mov_b32 s58, {hex(NEG_LOG2E)}")
    for j in range(5): A(f"v_mul_f32 v{74+j}, s58, v{60+j}")
    for j in range(5): A(f"v_exp_f32 v{74+j}, v{74+j}")
    for j in range(5): A(f"v_add_f32 v{74+j}, 1.0, v{74+j}")
    for j in range(5): A(f"v_rcp_f32 v{74+j}, v{74+j}")
    for j in range(5): A(f"v_mul_f32 v{74+j}, v{74+j}, v{60+j}")
    A("v_mul_f32 v71, v74, v65")
    for j in range(1,5): A(f"v_fmac_f32 v71, v{74+j}, v{65+j}")
    regs=[70,72,71]; tm=[80,81,82]
    row_allreduce(A, regs)
    swap_add(A, regs, tm, 16)
    swap_add(A, regs, tm, 32)
    A(f"""
    v_mov_b32 v73, 0
    v_mov_b32 v83, v71
    v_mov_b32 v81, v72
    v_mov_b32 v80, v70
    v_mov_b32 v82, v83
    v_mov_b32 v83, 0
    v_lshlrev_b32 v84, 4, v1
    ds_write_b128 v84, v[80:83]
    s_waitcnt lgkmcnt(0)
    s_barrier
    s_cmp_lg_u32 s36, 0
    s_cbranch_scc1 L_k1_end
    v_mov_b32 v84, 0
    ds_read_b128 v[16:19], v84
    ds_read_b128 v[20:23], v84 offset:16
    ds_read_b128 v[24:27], v84 offset:32
    ds_read_b128 v[28:31], v84 offset:48
    s_waitcnt lgkmcnt(0)
    """)
    for k in range(3):
        A(f"v_add_f32 v{16+k}, v{16+k}, v{20+k}")
        A(f"v_add_f32 v{24+k}, v{24+k}, v{28+k}")
    for k in range(3):
        A(f"v_add_f32 v{16+k}, v{16+k}, v{24+k}")
    A(f"""
    s_lshl_b32 s3, s2, 3
    s_lshl_b32 s4, s2, 2
    s_add_u32 s4, s4, {WS_EMB}
    v_mov_b32 v1, s3
    v_mov_b32 v2, s4
    v_mov_b32 v3, 0x7ffffff0
    v_cmp_eq_u32 vcc, 0, v0
    v_cndmask_b32 v1, v3, v1, vcc
    v_cndmask_b32 v2, v3, v2, vcc
    buffer_store_dwordx2 v[16:17], v1, s[32:35], 0 offen
    buffer_store_dword v18, v2, s[32:35], 0 offen
    """)
    A.label("L_k1_end")
    A("s_endpgm")
    return A.L, kdesc(name, 96, 96)

ACC = 64
ACT = 128
RAW = 176
def tile_setup(A):
    A("""
    v_lshrrev_b32 v2, 6, v0
    v_and_b32 v1, 63, v0
    v_readfirstlane_b32 s40, v2
    s_and_b32 s3, s2, 7
    s_lshr_b32 s45, s2, 3
    s_lshr_b32 s41, s3, 2
    s_and_b32 s3, s3, 3
    s_lshl_b32 s42, s3, 5
    s_lshr_b32 s46, s45, 2
    s_lshl_b32 s46, s46, 2
    s_add_u32 s42, s42, s46
    s_and_b32 s43, s45, 3
    s_add_u32 s44, s42, s43
    s_lshl_b32 s43, s43, 5
    """)

def silu_pairs(A, pairs, areg, breg, bc, sK):
    pass

def weights_prologue(A, wf_srd, wv):
    for f in range(18):
        so = f"s{60+f//4}" if f//4 else "0"
        A(f"buffer_load_dwordx4 {a(4*f,4)}, v{wv}, {s(wf_srd,4)}, {so} offen offset:{1024*(f%4)}")

def main_loop(A, tag, conv, wf_srd, wv, rd):
    def read(setno, row, kcl, dx):
        off = kcl*2*PP + row*ROWP + dx*16
        A(f"ds_read_b128 {v(ACT+24*setno+4*row,4)}, v{rd} offset:{off}")
    for row in range(6): read(0,row,0,0)
    A("s_mov_b32 s47, 0")
    body = Asm()
    B = body
    def readB(setno, row, kcl, dx):
        off = kcl*2*PP + row*ROWP + dx*16
        B(f"ds_read_b128 {v(ACT+24*setno+4*row,4)}, v{rd} offset:{off}")
    B(f"s_cmp_eq_u32 s47, 3")
    B(f"s_cselect_b32 s{wf_srd+2}, 0, s{wf_srd+2}")
    B(f"v_add_u32 v{wv}, {18*1024}, v{wv}")
    for g in range(6):
        st = g&1
        ng = g+1; nk, ndx = ng//3, ng%3
        n=0
        for dy in range(3):
            f = g*3+dy
            B(f"s_waitcnt vmcnt(17)" + (" lgkmcnt(2)" if dy==0 else ""))
            for r in range(4):
                if n==7: B("s_waitcnt lgkmcnt(4)")
                acc = v(ACC+16*r,16); act = v(ACT+24*st+4*(r+dy),4); w = a(4*f,4)
                if conv==1: B(f"v_mfma_f32_32x32x16_bf16 {acc}, {w}, {act}, {acc}")
                else:       B(f"v_mfma_f32_32x32x16_bf16 {acc}, {act}, {w}, {acc}")
                if n%2==0: readB(1-st, n//2, nk, ndx)
                n+=1
            so = f"s{60+f//4}" if f//4 else "0"
            B(f"buffer_load_dwordx4 {a(4*f,4)}, v{wv}, {s(wf_srd,4)}, {so} offen offset:{1024*(f%4)}")
    B(f"v_add_u32 v{rd}, {4*PP}, v{rd}")
    B("s_add_u32 s47, s47, 1")
    B("s_cmp_lt_u32 s47, 4")
    A.label(f"L_{tag}_loop")
    A.L += body.L
    A(f"s_cbranch_scc1 L_{tag}_loop")
    bad = check_seq(body.L+body.L)
    assert not bad, bad

def silu_block8(A, xs, avs, bvs, T, out4, sconst):
    X=T; E=T+8
    for i,x in enumerate(xs):
        A(f"v_lshlrev_b32 v{X+2*i}, 16, v{x}")
        A(f"v_and_b32 v{X+2*i+1}, s{sconst}, v{x}")
    for i in range(4):
        (ar,bc),(br,_) = avs[i], bvs[i]
        if bc is None:
            A(f"v_pk_fma_f32 {v(X+2*i,2)}, {v(X+2*i,2)}, {v(ar,2)}, {v(br,2)}")
        else:
            base_a = ar & ~1; base_b = br & ~1
            sa, sb = ar&1, br&1
            A(f"v_pk_fma_f32 {v(X+2*i,2)}, {v(X+2*i,2)}, {v(base_a,2)}, {v(base_b,2)} op_sel:[0,{sa},{sb}] op_sel_hi:[1,{sa},{sb}]")
    for i in range(4):
        A(f"v_pk_mul_f32 {v(E+2*i,2)}, {v(X+2*i,2)}, {s(sconst+2,2)}")
    for i in range(8): A(f"v_exp_f32 v{E+i}, v{E+i}")
    for i in range(4):
        A(f"v_pk_add_f32 {v(E+2*i,2)}, {v(E+2*i,2)}, {s(sconst+4,2)}")
    for i in range(8): A(f"v_rcp_f32 v{E+i}, v{E+i}")
    for i in range(4):
        A(f"v_pk_mul_f32 {v(X+2*i,2)}, {v(X+2*i,2)}, {v(E+2*i,2)}")

def consts(A, sc):
    A(f"s_mov_b32 s{sc}, 0xffff0000")
    A(f"s_mov_b32 s{sc+2}, {hex(NEG_LOG2E)}")
    A(f"s_mov_b32 s{sc+3}, {hex(NEG_LOG2E)}")
    A(f"s_mov_b32 s{sc+4}, 1.0")
    A(f"s_mov_b32 s{sc+5}, 1.0")

def rowflags(A):
    for rr in range(6):
        A(f"s_add_i32 s{80+rr}, s42, {rr-1}")
        A(f"s_cmp_lt_u32 s{80+rr}, 128")
        A(f"s_cselect_b32 s{86+rr}, 1.0, 0")
        A(f"s_cselect_b32 s{80+rr}, s{80+rr}, s42")

SC = 70
def gen_k2():
    A = Asm()
    name="conv1_kernel"
    khead(A,name)
    A("""
    s_cmp_ge_u32 s2, 256
    s_cbranch_scc1 L_k2_end
    s_load_dwordx2 s[4:5], s[0:1], 0
    s_load_dwordx4 s[8:11], s[0:1], 16
    s_load_dwordx2 s[12:13], s[0:1], 88
    """)
    tile_setup(A)
    consts(A, SC)
    for k in range(1,5): A(f"s_mov_b32 s{60+k}, {4096*k}")
    rowflags(A)
    A("s_waitcnt lgkmcnt(0)")
    srd(A,16,4,5,NX)
    srd(A,20,12,13,WS_LOW)
    srd(A,24,12,13,NX,WS_H)
    srd(A,28,8,9,256)
    srd(A,32,10,11,256)
    srd(A,36,12,13,WBYTES,WS_W1F)
    A("""
    v_and_b32 v3, 3, v1                 ; c
    v_lshrrev_b32 v4, 2, v1             ; (l>>2) 0..15
    s_and_b32 s48, s40, 1
    s_lshl_b32 s49, s48, 4
    v_add_u32 v4, s49, v4               ; q
    s_lshl_b32 s49, s48, 6
    s_lshl_b32 s50, s41, 7
    s_add_u32 s49, s49, s50
    v_add_u32 v5, s49, v1
    v_lshlrev_b32 v5, 3, v5
    buffer_load_dwordx2 v[6:7], v5, s[20:23], 0 offen
    v_lshlrev_b32 v5, 3, v4
    buffer_load_dwordx2 v[8:9], v5, s[28:31], 0 offen
    buffer_load_dwordx2 v[10:11], v5, s[32:35], 0 offen
    """)
    A("""
    s_lshl_b32 s49, s41, 22
    s_lshl_b32 s50, s43, 1
    s_add_u32 s49, s49, s50
    v_lshlrev_b32 v12, 17, v4
    v_lshl_add_u32 v12, v3, 4, v12
    v_add_u32 v12, s49, v12
    s_lshr_b32 s51, s40, 1              ; w>>1
    s_cmp_eq_u32 s51, 0
    """)
    for j in range(3):
        A(f"s_cselect_b32 s{52+j}, s{80+j}, s{83+j}")
        A(f"s_cselect_b32 s{55+j}, s{86+j}, s{89+j}")
    for j in range(3):
        A(f"s_lshl_b32 s{52+j}, s{52+j}, 8")
    for j in range(3):
        for m in range(4):
            A(f"s_add_u32 s3, s{52+j}, {32768*m}")
            A(f"buffer_load_dwordx4 {v(RAW+16*j+4*m,4)}, v12, s[16:19], s3 offen")
    for R in range(2):
        A(f"""
        s_lshl_b32 s3, s51, 2
        s_add_u32 s3, s3, {8*R}
        v_add_u32 v13, s3, v3              ; px12
        v_lshrrev_b32 v14, 1, v13          ; rr
        v_and_b32 v15, 1, v13              ; side
        v_min_u32 v16, 5, v14
        v_add_u32 v17, s42, v16
        v_subrev_u32 v17, 1, v17
        v_mul_u32_u24 v18, 33, v15
        v_add_u32 v18, s43, v18
        v_subrev_u32 v18, 1, v18
        v_cmp_gt_u32 vcc, 128, v17
        v_mov_b32 v20, s42
        v_cndmask_b32 v19, 0, 1.0, vcc
        v_cndmask_b32 v17, v20, v17, vcc
        v_cmp_gt_u32 vcc, 128, v18
        v_mov_b32 v20, s43
        v_cndmask_b32 v19, 0, v19, vcc
        v_cndmask_b32 v18, v20, v18, vcc
        v_cmp_gt_u32 vcc, 12, v13
        v_lshlrev_b32 v21, 17, v4
        v_lshl_add_u32 v21, v17, 8, v21
        v_lshl_add_u32 v21, v18, 1, v21
        s_lshl_b32 s3, s41, 22
        v_add_u32 v21, s3, v21
        v_mov_b32 v{22+R}, v19
        """)
        A(f"""
        v_lshrrev_b32 v24, 1, v4
        v_mul_u32_u24 v24, {PP}, v24
        v_mul_u32_u24 v25, 34, v16
        v_mul_u32_u24 v26, 33, v15
        v_add_u32 v25, v25, v26
        v_lshl_add_u32 v24, v25, 4, v24
        v_and_b32 v25, 1, v4
        v_lshl_add_u32 v24, v25, 3, v24
        v_mov_b32 v26, {16*PP}
        v_lshl_add_u32 v26, v1, 3, v26
        v_cndmask_b32 v{28+R}, v26, v24, vcc
        """)
        for m in range(4):
            A(f"s_mov_b32 s3, {32768*m}")
            A(f"buffer_load_short_d16_hi v{RAW+48+4*R+m}, v21, s[16:19], s3 offen")
    A(f"""
    s_lshl_b32 s3, s41, 9
    s_lshl_b32 s48, s40, 7
    s_add_u32 s3, s3, s48
    s_add_u32 s3, s3, {WS_EMB}
    v_lshrrev_b32 v30, 5, v1
    v_lshlrev_b32 v30, 4, v30
    v_add_u32 v30, s3, v30
    """)
    for r in range(4):
        for i in range(4):
            A(f"buffer_load_dwordx4 {v(ACC+16*r+4*i,4)}, v30, s[20:23], 0 offen offset:{32*i}")
    A(f"""
    s_lshr_b32 s3, s2, 3
    s_mul_i32 s3, s3, {72*128}
    v_lshlrev_b32 v31, 7, v0
    v_add_u32 v31, s3, v31
    v_mov_b32 v32, 0x7ffffff0
    v_cmp_gt_u32 vcc, 72, v0
    s_mul_i32 s3, s40, {72*1024}
    v_lshlrev_b32 v34, 4, v1
    v_cndmask_b32 v31, v32, v31, vcc
    v_add_u32 v34, s3, v34
    buffer_load_dword v33, v31, s[36:39], 0 offen
    """)
    WV=34
    weights_prologue(A,36,WV)
    A("s_waitcnt vmcnt(55)")
    row_allreduce(A,[6,7])
    swap_add(A,[6,7],[35,36],16)
    A(f"""
    v_mul_f32 v6, {fhex(INV_N)}, v6        ; mean
    v_mul_f32 v7, {fhex(INV_N)}, v7        ; E[x^2]
    v_fma_f32 v7, -v6, v6, v7
    v_max_f32 v7, 0, v7
    v_add_f32 v7, {fhex(1e-5)}, v7
    v_rsq_f32 v7, v7
    v_lshlrev_b32 v40, 16, v8
    v_and_b32 v41, s{SC}, v8
    v_lshlrev_b32 v42, 16, v9
    v_and_b32 v43, s{SC}, v9
    v_lshlrev_b32 v44, 16, v10
    v_and_b32 v45, s{SC}, v10
    v_lshlrev_b32 v46, 16, v11
    v_and_b32 v47, s{SC}, v11
    """)
    for m in range(4): A(f"v_mul_f32 v{40+m}, v{40+m}, v7")
    for m in range(4): A(f"v_fma_f32 v{44+m}, -v6, v{40+m}, v{44+m}")
    A(f"""
    v_lshrrev_b32 v35, 1, v4
    v_mul_u32_u24 v35, {PP}, v35
    v_lshl_add_u32 v35, v3, 7, v35
    v_and_b32 v36, 1, v4
    v_lshl_add_u32 v35, v36, 3, v35
    s_mul_i32 s3, s51, {3*ROWP}
    s_add_u32 s3, s3, 16
    v_add_u32 v35, s3, v35
    """)
    T=2
    T=48
    for j in range(3):
        A(f"s_waitcnt vmcnt({55-4*(j+1)})")
        for m in range(4): A(f"v_mul_f32 v{8+m}, s{55+j}, v{40+m}")
        for m in range(4): A(f"v_mul_f32 v{12+m}, s{55+j}, v{44+m}")
        for d in range(4):
            xs=[RAW+16*j+4*m+d for m in range(4)]
            silu_block8(A, xs, [(8+m,1) for m in range(4)], [(12+m,1) for m in range(4)], T, None, SC)
            A(f"v_cvt_pk_bf16_f32 v16, v{T+0}, v{T+2}")
            A(f"v_cvt_pk_bf16_f32 v17, v{T+4}, v{T+6}")
            A(f"v_cvt_pk_bf16_f32 v18, v{T+1}, v{T+3}")
            A(f"v_cvt_pk_bf16_f32 v19, v{T+5}, v{T+7}")
            A(f"ds_write_b64 v35, v[16:17] offset:{j*ROWP+32*d}")
            A(f"ds_write_b64 v35, v[18:19] offset:{j*ROWP+32*d+16}")
    for R in range(2):
        A(f"s_waitcnt vmcnt({55-12-4*(R+1)})")
        for m in range(4): A(f"v_mul_f32 v{8+m}, v{22+R}, v{40+m}")
        for m in range(4): A(f"v_mul_f32 v{12+m}, v{22+R}, v{44+m}")
        x=RAW+48+4*R
        for m in range(4): A(f"v_fma_f32 v{T+m}, v{x+m}, v{8+m}, v{12+m}")
        for m in range(4): A(f"v_mul_f32 v{T+4+m}, s{SC+2}, v{T+m}")
        for m in range(4): A(f"v_exp_f32 v{T+4+m}, v{T+4+m}")
        for m in range(4): A(f"v_add_f32 v{T+4+m}, 1.0, v{T+4+m}")
        for m in range(4): A(f"v_rcp_f32 v{T+4+m}, v{T+4+m}")
        for m in range(4): A(f"v_mul_f32 v{T+m}, v{T+m}, v{T+4+m}")
        A(f"v_cvt_pk_bf16_f32 v16, v{T+0}, v{T+1}")
        A(f"v_cvt_pk_bf16_f32 v17, v{T+2}, v{T+3}")
        A(f"ds_write_b64 v{28+R}, v[16:17]")
    A(f"""
    v_and_b32 v2, 31, v1
    v_lshrrev_b32 v3, 5, v1
    v_mul_u32_u24 v3, {PP}, v3
    v_lshl_add_u32 v2, v2, 4, v3
    s_waitcnt lgkmcnt(0)
    s_barrier
    """)
    main_loop(A,"k2",1,36,WV,2)
    A("s_nop 7"); A("s_nop 7")
    S0,S1,Q0,Q1 = 4,6,8,10
    for r in (4,5,6,7,8,9,10,11): A(f"v_mov_b32 v{r}, 0")
    for k in range(32):
        p = v(ACC+2*k,2)
        sreg = S0 if k%2==0 else S1
        qreg = Q0 if k%2==0 else Q1
        A(f"v_pk_add_f32 {v(sreg,2)}, {v(sreg,2)}, {p}")
        A(f"v_pk_fma_f32 {v(qreg,2)}, {p}, {p}, {v(qreg,2)}")
    A("v_pk_add_f32 v[4:5], v[4:5], v[6:7]")
    A("v_pk_add_f32 v[8:9], v[8:9], v[10:11]")
    A("v_add_f32 v4, v4, v5")
    A("v_add_f32 v5, v8, v9")
    P=128
    for r in range(4):
        for i in range(4):
            A(f"v_cvt_pk_bf16_f32 v{P+8*r+2*i}, v{ACC+16*r+4*i}, v{ACC+16*r+4*i+1}")
            A(f"v_cvt_pk_bf16_f32 v{P+8*r+2*i+1}, v{ACC+16*r+4*i+2}, v{ACC+16*r+4*i+3}")
    row_allreduce(A,[4,5])
    for r in range(4):
        for m in range(2):
            A(f"v_permlane32_swap_b32 v{P+8*r+4*m}, v{P+8*r+4*m+2}")
            A(f"v_permlane32_swap_b32 v{P+8*r+4*m+1}, v{P+8*r+4*m+3}")
    A(f"""
    s_lshl_b32 s3, s41, 4
    s_lshl_b32 s48, s40, 2
    s_add_u32 s3, s3, s48
    s_lshl_b32 s3, s3, 14
    s_lshl_b32 s48, s42, 7
    s_add_u32 s3, s3, s48
    s_add_u32 s3, s3, s43
    v_lshrrev_b32 v12, 5, v1
    v_lshlrev_b32 v12, 14, v12
    v_and_b32 v13, 31, v1
    v_add_u32 v12, v12, v13
    v_add_u32 v12, s3, v12
    v_lshlrev_b32 v12, 4, v12
    s_mov_b32 s48, 4096
    s_mov_b32 s49, 524288
    s_mov_b32 s50, 528384
    """)
    for r in range(4):
        for m in range(2):
            so = {(0,0):"0",(1,0):"s48",(0,1):"s49",(1,1):"s50"}[(r>>1,m)]
            A(f"buffer_store_dwordx4 {v(P+8*r+4*m,4)}, v12, s[24:27], {so} offen offset:{2048*(r&1)}")
    swap_add(A,[4,5],[6,7],16)
    swap_add(A,[4,5],[6,7],32)
    A(f"""
    s_lshl_b32 s3, s41, 3
    s_lshl_b32 s48, s40, 1
    s_add_u32 s3, s3, s48
    s_lshl_b32 s3, s3, 7
    s_add_u32 s3, s3, s44
    s_lshl_b32 s3, s3, 2
    s_add_u32 s3, s3, {WS_STATS2}
    v_mov_b32 v12, s3
    v_mov_b32 v13, 0x7ffffff0
    v_cmp_eq_u32 vcc, 0, v1
    v_cndmask_b32 v12, v13, v12, vcc
    buffer_store_dword v4, v12, s[20:23], 0 offen
    buffer_store_dword v5, v12, s[20:23], 0 offen offset:512
    """)
    A.label("L_k2_end")
    A("s_endpgm")
    return A.L, kdesc(name, 256+72, 256)

def gen_k3():
    A = Asm()
    name="conv2_kernel"
    khead(A,name)
    A("""
    s_cmp_ge_u32 s2, 256
    s_cbranch_scc1 L_k3_end
    s_load_dwordx2 s[4:5], s[0:1], 0
    s_load_dwordx4 s[8:11], s[0:1], 48
    s_load_dwordx2 s[14:15], s[0:1], 72
    s_load_dwordx2 s[12:13], s[0:1], 88
    """)
    tile_setup(A)
    consts(A, SC)
    for k in range(1,5): A(f"s_mov_b32 s{60+k}, {4096*k}")
    rowflags(A)
    A("s_waitcnt lgkmcnt(0)")
    srd(A,16,4,5,NX)
    srd(A,20,12,13,WS_LOW)
    srd(A,24,12,13,NX,WS_H)
    srd(A,28,8,9,256)
    srd(A,32,10,11,256)
    srd(A,36,12,13,WBYTES,WS_W2F)
    srd(A,76,14,15,NX)
    A(f"""
    v_lshrrev_b32 v3, 3, v1
    v_lshlrev_b32 v3, 9, v3
    v_and_b32 v4, 7, v1
    v_lshl_add_u32 v3, v4, 4, v3
    s_lshl_b32 s3, s41, 12
    s_add_u32 s3, s3, {WS_STATS2}
    v_add_u32 v3, s3, v3
    """)
    for j in range(4):
        A(f"buffer_load_dwordx4 {v(4+4*j,4)}, v3, s[20:23], 0 offen offset:{128*j}")
    A("""
    v_lshrrev_b32 v20, 2, v1            ; oct
    v_and_b32 v21, 3, v1                ; sub
    v_lshlrev_b32 v22, 4, v20
    buffer_load_dwordx4 v[24:27], v22, s[28:31], 0 offen
    buffer_load_dwordx4 v[28:31], v22, s[32:35], 0 offen
    """)
    A("""
    s_lshl_b32 s3, s41, 18
    s_lshl_b32 s48, s40, 3
    s_add_u32 s3, s3, s48
    s_add_u32 s3, s3, s43
    v_lshlrev_b32 v22, 14, v20
    v_add_u32 v22, v22, v21
    v_add_u32 v22, s3, v22
    v_lshlrev_b32 v22, 4, v22
    """)
    for rr in range(6):
        A(f"s_lshl_b32 s3, s{80+rr}, 11")
        for e in range(2):
            A(f"buffer_load_dwordx4 {v(RAW+4*(2*rr+e),4)}, v22, s[24:27], s3 offen offset:{64*e}")
    A(f"""
    s_lshl_b32 s3, s40, 2
    v_add_u32 v32, s3, v21              ; px12
    v_lshrrev_b32 v33, 1, v32           ; rr
    v_and_b32 v34, 1, v32               ; side
    v_min_u32 v33, 5, v33
    v_add_u32 v35, s42, v33
    v_subrev_u32 v35, 1, v35            ; y
    v_mul_u32_u24 v36, 33, v34
    v_add_u32 v36, s43, v36
    v_subrev_u32 v36, 1, v36            ; col
    v_cmp_gt_u32 vcc, 128, v35
    v_mov_b32 v37, s42
    v_cndmask_b32 v38, 0, 1.0, vcc
    v_cndmask_b32 v35, v37, v35, vcc
    v_cmp_gt_u32 vcc, 128, v36
    v_mov_b32 v37, s43
    v_cndmask_b32 v38, 0, v38, vcc      ; flag
    v_cndmask_b32 v36, v37, v36, vcc
    s_lshl_b32 s3, s41, 18
    v_lshlrev_b32 v37, 14, v20
    v_lshl_add_u32 v37, v35, 7, v37
    v_add_u32 v37, v37, v36
    v_add_u32 v37, s3, v37
    v_lshlrev_b32 v37, 4, v37
    buffer_load_dwordx4 {v(RAW+48,4)}, v37, s[24:27], 0 offen
    v_cmp_gt_u32 vcc, 12, v32
    v_mul_u32_u24 v39, {PP}, v20
    v_mul_u32_u24 v40, 34, v33
    v_mul_u32_u24 v41, 33, v34
    v_add_u32 v40, v40, v41
    v_lshl_add_u32 v40, v40, 4, v39
    v_mov_b32 v41, {16*PP}
    v_lshl_add_u32 v41, v1, 4, v41
    v_cndmask_b32 v40, v41, v40, vcc
    s_lshl_b32 s3, s40, 7
    s_add_u32 s3, s3, 16
    v_lshl_add_u32 v39, v21, 4, v39
    v_add_u32 v39, s3, v39
    """)
    A(f"""
    s_lshl_b32 s3, s41, 7
    s_lshl_b32 s48, s40, 5
    s_add_u32 s3, s3, s48
    s_lshl_b32 s3, s3, 15
    s_lshl_b32 s48, s42, 8
    s_add_u32 s3, s3, s48
    s_lshl_b32 s48, s43, 1
    s_add_u32 s3, s3, s48
    v_and_b32 v42, 31, v1
    v_lshlrev_b32 v42, 15, v42
    v_lshrrev_b32 v43, 5, v1
    v_lshl_add_u32 v42, v43, 4, v42
    v_add_u32 v42, s3, v42
    """)
    XR = ACT
    for r in range(4):
        for m in range(2):
            A(f"buffer_load_dwordx4 {v(XR+8*r+4*m,4)}, v42, s[16:19], 0 offen offset:{256*r+32*m}")
    A(f"""
    s_lshr_b32 s3, s2, 3
    s_mul_i32 s3, s3, {72*128}
    v_lshlrev_b32 v43, 7, v0
    v_add_u32 v43, s3, v43
    v_mov_b32 v44, 0x7ffffff0
    v_cmp_gt_u32 vcc, 72, v0
    s_mul_i32 s3, s40, {72*1024}
    v_lshlrev_b32 v46, 4, v1
    v_cndmask_b32 v43, v44, v43, vcc
    v_add_u32 v46, s3, v46
    buffer_load_dword v45, v43, s[36:39], 0 offen
    """)
    WV=46
    weights_prologue(A,36,WV)
    A("s_waitcnt vmcnt(42)")
    for j in range(1,4):
        for d in range(4): A(f"v_add_f32 v{4+d}, v{4+d}, v{4+4*j+d}")
    A("v_add_f32 v4, v4, v5"); A("v_add_f32 v6, v6, v7"); A("v_add_f32 v4, v4, v6")
    A("v_add_f32_dpp v4, v4, v4 quad_perm:[1,0,3,2] row_mask:0xf bank_mask:0xf")
    A("v_add_f32_dpp v4, v4, v4 quad_perm:[2,3,0,1] row_mask:0xf bank_mask:0xf")
    A("v_add_f32_dpp v4, v4, v4 row_half_mirror row_mask:0xf bank_mask:0xf")
    A("v_mov_b32_dpp v5, v4 row_ror:8 row_mask:0xf bank_mask:0xf")
    A(f"""
    v_and_b32 v6, 8, v1
    v_cmp_eq_u32 vcc, 0, v6
    v_cndmask_b32 v6, v5, v4, vcc       ; sum
    v_cndmask_b32 v7, v4, v5, vcc       ; sumsq
    v_mul_f32 v6, {fhex(INV_N)}, v6
    v_mul_f32 v7, {fhex(INV_N)}, v7
    v_fma_f32 v7, -v6, v6, v7
    v_max_f32 v7, 0, v7
    v_add_f32 v7, {fhex(1e-5)}, v7
    v_rsq_f32 v7, v7
    s_waitcnt vmcnt(40)
    """)
    for d in range(4):
        A(f"v_lshlrev_b32 v{48+2*d}, 16, v{24+d}")
        A(f"v_and_b32 v{49+2*d}, s{SC}, v{24+d}")
        A(f"v_lshlrev_b32 v{56+2*d}, 16, v{28+d}")
        A(f"v_and_b32 v{57+2*d}, s{SC}, v{28+d}")
    for k in range(8): A(f"v_mul_f32 v{48+k}, v{48+k}, v7")
    for k in range(8): A(f"v_fma_f32 v{56+k}, -v6, v{48+k}, v{56+k}")
    T=4; EA=24; EB=232
    def block(raw, flag, addr, off):
        for k in range(8): A(f"v_mul_f32 v{EA+k}, {flag}, v{48+k}")
        for k in range(8): A(f"v_mul_f32 v{EB+k}, {flag}, v{56+k}")
        return
    def trans(raw, addr, off):
        silu_block8(A,[raw+d for d in range(4)],[(EA+2*d,None) for d in range(4)],[(EB+2*d,None) for d in range(4)],T,None,SC)
        for d in range(4): A(f"v_cvt_pk_bf16_f32 v{20+d}, v{T+2*d}, v{T+2*d+1}")
        A(f"ds_write_b128 v{addr}, v[20:23] offset:{off}")
    for rr in range(6):
        A(f"s_waitcnt vmcnt({40-2*(rr+1)})")
        if rr in (0,1,5):
            block(None, f"s{86+rr}", None, None)
        for e in range(2):
            trans(RAW+4*(2*rr+e), 39, rr*ROWP+64*e)
    A("s_waitcnt vmcnt(27)")
    block(None,"v38",None,None)
    trans(RAW+48, 40, 0)
    A("s_waitcnt vmcnt(19)")
    for r in range(4):
        for m in range(2):
            b=XR+8*r+4*m
            A(f"v_permlane32_swap_b32 v{b}, v{b+2}")
            A(f"v_permlane32_swap_b32 v{b+1}, v{b+3}")
    for r in range(4):
        for i in range(4):
            for k in range(2):
                src=XR+8*r+2*i+k
                A(f"v_lshlrev_b32 v{ACC+16*r+4*i+2*k}, 16, v{src}")
                A(f"v_and_b32 v{ACC+16*r+4*i+2*k+1}, s{SC}, v{src}")
    A(f"""
    v_and_b32 v2, 31, v1
    v_lshrrev_b32 v3, 5, v1
    v_mul_u32_u24 v3, {PP}, v3
    v_lshl_add_u32 v2, v2, 4, v3
    s_waitcnt lgkmcnt(0)
    s_barrier
    """)
    main_loop(A,"k3",2,36,WV,2)
    A("s_nop 7"); A("s_nop 7")
    P=128
    for r in range(4):
        for i in range(4):
            A(f"v_cvt_pk_bf16_f32 v{P+8*r+2*i}, v{ACC+16*r+4*i}, v{ACC+16*r+4*i+1}")
            A(f"v_cvt_pk_bf16_f32 v{P+8*r+2*i+1}, v{ACC+16*r+4*i+2}, v{ACC+16*r+4*i+3}")
    for r in range(4):
        for m in range(2):
            A(f"v_permlane32_swap_b32 v{P+8*r+4*m}, v{P+8*r+4*m+2}")
            A(f"v_permlane32_swap_b32 v{P+8*r+4*m+1}, v{P+8*r+4*m+3}")
    for r in range(4):
        for m in range(2):
            A(f"buffer_store_dwordx4 {v(P+8*r+4*m,4)}, v42, s[76:79], 0 offen offset:{256*r+32*m}")
    A.label("L_k3_end")
    A("s_endpgm")
    return A.L, kdesc(name,256+72,256)

LDS_CONV = 16*PP + 1024 + 6*PP

HEADER = open("standalone__adm_resblock__diffusion.s.ref").read().split("; Override launch")[0]

def build(path):
    out = HEADER
    out += f"; @launch kernel=prep_kernel grid=(256,1,1) block=(256,1,1) lds=64\n"
    out += f"; @launch kernel=conv1_kernel grid=(256,1,1) block=(256,1,1) lds={LDS_CONV}\n"
    out += f"; @launch kernel=conv2_kernel grid=(256,1,1) block=(256,1,1) lds={LDS_CONV}\n"
    out += '.amdgcn_target "amdgcn-amd-amdhsa--gfx950"\n.text\n'
    for g in (gen_k1, gen_k2, gen_k3):
        L, kd = g()
        L = fix_hazards(L)
        out += "\n".join(L) + "\n" + kd
    open(path,"w").write(out)

if __name__=="__main__":
    build(sys.argv[1] if len(sys.argv)>1 else "standalone__adm_resblock__diffusion.s")
```

```python
import sys
sys.path.insert(0, "tools")
from asmlib import *

WS_STATS1 = 0x0
WS_EMB    = 0x1000
WS_STATS2 = 0x2000
WS_W1F    = 0x10000
WS_W2F    = 0x60000
WS_LOW    = 0x100000
WS_H      = 0x100000
NX = 2*128*128*128*2
WBYTES = 294912
PP = 3264
ROWP = 544
NEG_LOG2E = 0xBFB8AA3B
INV_N = 1.0/524288.0
def fhex(f):
    import struct
    return "0x%08x" % struct.unpack("<I", struct.pack("<f", f))[0]

def srd(A, r, lo, hi, size, off=None):
    if off is None:
        A(f"s_mov_b32 s{r}, s{lo}")
        A(f"s_mov_b32 s{r+1}, s{hi}")
    else:
        A(f"s_add_u32 s{r}, s{lo}, {off}")
        A(f"s_addc_u32 s{r+1}, s{hi}, 0")
    A(f"s_mov_b32 s{r+2}, {size}")
    A(f"s_mov_b32 s{r+3}, 0x20000")

def row_allreduce(A, regs):
    for sh in (8,4,2,1):
        for r in regs:
            A(f"v_add_f32_dpp v{r}, v{r}, v{r} row_ror:{sh} row_mask:0xf bank_mask:0xf")

def swap_add(A, regs, tmps, which):
    for r,t in zip(regs,tmps):
        A(f"v_mov_b32 v{t}, v{r}")
    for r,t in zip(regs,tmps):
        A(f"v_permlane{which}_swap_b32 v{r}, v{t}")
    for r,t in zip(regs,tmps):
        A(f"v_add_f32 v{r}, v{r}, v{t}")

def kdesc(name, vg, acc):
    return f"""
.section .rodata,"a"
.p2align 6
.amdhsa_kernel {name}
  .amdhsa_next_free_vgpr {vg}
  .amdhsa_next_free_sgpr 102
  .amdhsa_accum_offset {acc}
  .amdhsa_group_segment_fixed_size 0
  .amdhsa_kernarg_size 96
  .amdhsa_user_sgpr_count 2
  .amdhsa_user_sgpr_kernarg_segment_ptr 1
  .amdhsa_system_sgpr_workgroup_id_x 1
  .amdhsa_float_denorm_mode_32 3
.end_amdhsa_kernel
.text
"""

PROF = False
WS_PROF = 0x2000000
_stamp_n = [0]
def stamp(A, reset=False):
    if not PROF: return
    if reset:
        _stamp_n[0] = 0
    k = _stamp_n[0]; _stamp_n[0] += 1
    A("s_memrealtime s[92:93]")
    A("s_waitcnt lgkmcnt(0)")
    A(f"s_mov_b32 s{94+k}, s92")
    A("s_memtime s[92:93]")
    A("s_waitcnt lgkmcnt(0)")
    A(f"v_mov_b32 v{PV+k}, s92")
PV = 244
DBGMODE = False
def stamp_flush(A, kidx, wsreg):
    if not PROF: return
    stamp(A)
    n = _stamp_n[0]
    if DBGMODE:
        A("s_cmp_lg_u32 s2, 0")
        A(f"s_cbranch_scc1 L_noflush{kidx}")
        A("s_load_dwordx2 s[4:5], s[0:1], 80")
        A("s_waitcnt lgkmcnt(0)")
        A(f"s_add_u32 s4, s4, {512*(2-kidx)}")
        A("s_addc_u32 s5, s5, 0")
        A("s_mov_b32 s6, 64")
        A("s_mov_b32 s7, 0x20000")
        A(f"v_mov_b32 v1, {[0,16,40][kidx]}")
        A("v_mov_b32 v2, 0x7ffffff0")
        A("v_cmp_eq_u32 vcc, 0, v0")
        A("v_cndmask_b32 v1, v2, v1, vcc")
        for k in range(n):
            A(f"v_mov_b32 v3, s{94+k}")
            A(f"buffer_store_dword v3, v1, s[4:7], 0 offen offset:{4*k}")
        A(f"L_noflush{kidx}:")
        return
    A(f"s_add_u32 s4, s{wsreg}, {WS_PROF}")
    A(f"s_addc_u32 s5, s{wsreg+1}, 0")
    A("s_mov_b32 s6, 0x100000")
    A("s_mov_b32 s7, 0x20000")
    A(f"s_lshl_b32 s3, s2, 6")
    A(f"s_add_u32 s3, s3, {kidx*256*64}")
    A("v_mov_b32 v1, s3")
    A("v_mov_b32 v2, 0x7ffffff0")
    A("v_cmp_eq_u32 vcc, 0, v0")
    A("v_cndmask_b32 v1, v2, v1, vcc")
    for k in range(n):
        A(f"v_mov_b32 v3, s{94+k}")
        A(f"buffer_store_dword v3, v1, s[4:7], 0 offen offset:{4*k}")
        A(f"buffer_store_dword v{PV+k}, v1, s[4:7], 0 offen offset:{32+4*k}")

def khead(A, name):
    A(f".globl {name}")
    A(".p2align 8")
    A(f".type {name},@function")
    A.label(name)

def gen_k1():
    A = Asm()
    name = "prep_kernel"
    khead(A, name)
    A(f"""
    s_cmp_ge_u32 s2, 256
    s_cbranch_scc1 L_k1_end
    """)
    stamp(A, True)
    A(f"""
    s_load_dwordx4 s[4:7], s[0:1], 0
    s_load_dwordx4 s[8:11], s[0:1], 32
    s_load_dwordx2 s[12:13], s[0:1], 64
    s_load_dwordx2 s[14:15], s[0:1], 88
    v_lshrrev_b32 v1, 6, v0
    v_lshlrev_b32 v2, 4, v0
    v_readfirstlane_b32 s36, v1
    s_lshl_b32 s3, s2, 15
    s_waitcnt lgkmcnt(0)
    """)
    stamp(A)
    A("s_add_u32 s16, s4, s3"); A("s_addc_u32 s17, s5, 0"); A("s_mov_b32 s18, 32768"); A("s_mov_b32 s19, 0x20000")
    for j in range(1,8): A(f"s_mov_b32 s{40+j}, {4096*j}")
    A("buffer_load_dwordx4 v[16:19], v2, s[16:19], 0 offen")
    for j in range(1,8):
        A(f"buffer_load_dwordx4 v[{16+4*j}:{19+4*j}], v2, s[16:19], s{40+j} offen")
    A("s_cmp_ge_u32 s36, 2")
    A("s_cselect_b32 s20, s12, s8"); A("s_cselect_b32 s21, s13, s9")
    A(f"s_mov_b32 s22, {WBYTES}"); A("s_mov_b32 s23, 0x20000")
    A(f"s_mov_b32 s37, {WS_W1F}")
    A(f"s_cselect_b32 s37, {WS_W2F}, s37")
    m9,s9 = magic(9,127); m3,s3_ = magic(3,15)
    A(f"""
    v_and_b32 v3, 127, v0
    v_mul_u32_u24 v4, {m9}, v3
    v_lshrrev_b32 v4, {s9}, v4          ; osub
    v_mul_u32_u24 v5, 9, v4
    v_sub_u32 v5, v3, v5                ; tap
    v_mul_u32_u24 v6, {m3}, v5
    v_lshrrev_b32 v6, {s3_}, v6         ; dy
    v_mul_u32_u24 v7, 3, v6
    v_sub_u32 v7, v5, v7                ; dx
    s_lshr_b32 s38, s2, 4               ; o-octet
    s_and_b32 s39, s2, 15               ; c-octet
    s_mul_i32 s48, s38, {8*2304}
    s_mul_i32 s49, s39, {8*18}
    s_add_u32 s48, s48, s49
    v_mul_u32_u24 v8, 2304, v4
    v_lshl_add_u32 v8, v5, 1, v8
    v_add_u32 v8, s48, v8
    v_mov_b32 v9, 0x7ffffff0
    v_cmp_gt_u32 vcc, 72, v3
    """)
    A("v_cndmask_b32 v8, v9, v8, vcc")
    for j in range(8):
        A(f"buffer_load_ushort v{48+j}, v8, s[20:23], 0 offen offset:{18*j}")
    A(f"""
    s_lshr_b32 s48, s2, 6               ; w
    s_mul_i32 s48, s48, 72
    s_lshr_b32 s49, s39, 1              ; kc
    s_mul_i32 s49, s49, 9
    s_add_u32 s48, s48, s49
    s_lshl_b32 s48, s48, 10
    s_and_b32 s49, s38, 3
    s_lshl_b32 s49, s49, 7              ; 8*(oo&3)*16
    s_add_u32 s48, s48, s49
    s_and_b32 s49, s2, 1
    s_lshl_b32 s49, s49, 9              ; 32*16
    s_add_u32 s48, s48, s49
    s_add_u32 s48, s48, s37
    v_mul_u32_u24 v10, 3, v7
    v_add_u32 v10, v10, v6
    v_lshlrev_b32 v10, 10, v10
    v_lshl_add_u32 v10, v4, 4, v10
    v_add_u32 v10, s48, v10
    v_cndmask_b32 v10, v9, v10, vcc
    """)
    A(f"""
    s_lshr_b32 s50, s2, 7               ; b
    s_mul_i32 s51, s50, 2304
    s_add_u32 s24, s6, s51
    s_addc_u32 s25, s7, 0
    s_mov_b32 s26, 2304
    s_mov_b32 s27, 0x20000
    s_mov_b32 s28, s10
    s_mov_b32 s29, s11
    s_mov_b32 s30, {WBYTES}
    s_mov_b32 s31, 0x20000
    s_and_b32 s52, s2, 127
    s_lshl_b32 s52, s52, 1
    v_lshlrev_b32 v11, 1, v0
    v_lshlrev_b32 v12, 8, v0
    v_add_u32 v12, s52, v12
    """)
    for j in range(5):
        A(f"buffer_load_short_d16_hi v{60+j}, v11, s[24:27], 0 offen offset:{512*j}")
    A("buffer_load_short_d16_hi v65, v12, s[28:31], 0 offen")
    for j in range(1,5):
        A(f"s_mov_b32 s{52+j}, {65536*j}")
        A(f"buffer_load_short_d16_hi v{65+j}, v12, s[28:31], s{52+j} offen")
    srd(A, 32, 14, 15, WS_LOW)
    A("v_mov_b32 v13, 0x3f803f80")
    for r in (70,71,72,73): A(f"v_mov_b32 v{r}, 0")
    for j in range(8):
        A(f"s_waitcnt vmcnt({18+7-j})")
        for d in range(4):
            r = 16+4*j+d
            A(f"v_dot2_f32_bf16 v{70+(d&1)}, v{r}, v13, v{70+(d&1)}")
            A(f"v_dot2_f32_bf16 v{72+(d&1)}, v{r}, v{r}, v{72+(d&1)}")
    stamp(A)
    A("s_waitcnt vmcnt(10)")
    for j in range(4):
        A(f"v_lshl_or_b32 v{56+j}, v{49+2*j}, 16, v{48+2*j}")
    A("buffer_store_dwordx4 v[56:59], v10, s[32:35], 0 offen")
    A("v_add_f32 v70, v70, v71")
    A("v_add_f32 v72, v72, v73")
    A("s_waitcnt vmcnt(1)")
    A(f"s_mov_b32 s58, {hex(NEG_LOG2E)}")
    for j in range(5): A(f"v_mul_f32 v{74+j}, s58, v{60+j}")
    for j in range(5): A(f"v_exp_f32 v{74+j}, v{74+j}")
    for j in range(5): A(f"v_add_f32 v{74+j}, 1.0, v{74+j}")
    for j in range(5): A(f"v_rcp_f32 v{74+j}, v{74+j}")
    for j in range(5): A(f"v_mul_f32 v{74+j}, v{74+j}, v{60+j}")
    A("v_mul_f32 v71, v74, v65")
    for j in range(1,5): A(f"v_fmac_f32 v71, v{74+j}, v{65+j}")
    regs=[70,72,71]; tm=[80,81,82]
    row_allreduce(A, regs)
    swap_add(A, regs, tm, 16)
    swap_add(A, regs, tm, 32)
    A(f"""
    v_mov_b32 v73, 0
    v_mov_b32 v83, v71
    v_mov_b32 v81, v72
    v_mov_b32 v80, v70
    v_mov_b32 v82, v83
    v_mov_b32 v83, 0
    v_lshlrev_b32 v84, 4, v1
    ds_write_b128 v84, v[80:83]
    s_waitcnt lgkmcnt(0)
    s_barrier
    s_cmp_lg_u32 s36, 0
    s_cbranch_scc1 L_k1_end
    v_mov_b32 v84, 0
    ds_read_b128 v[16:19], v84
    ds_read_b128 v[20:23], v84 offset:16
    ds_read_b128 v[24:27], v84 offset:32
    ds_read_b128 v[28:31], v84 offset:48
    s_waitcnt lgkmcnt(0)
    """)
    for k in range(3):
        A(f"v_add_f32 v{16+k}, v{16+k}, v{20+k}")
        A(f"v_add_f32 v{24+k}, v{24+k}, v{28+k}")
    for k in range(3):
        A(f"v_add_f32 v{16+k}, v{16+k}, v{24+k}")
    A(f"""
    s_lshl_b32 s3, s2, 3
    s_lshl_b32 s4, s2, 2
    s_add_u32 s4, s4, {WS_EMB}
    v_mov_b32 v1, s3
    v_mov_b32 v2, s4
    v_mov_b32 v3, 0x7ffffff0
    v_cmp_eq_u32 vcc, 0, v0
    v_cndmask_b32 v1, v3, v1, vcc
    v_cndmask_b32 v2, v3, v2, vcc
    buffer_store_dwordx2 v[16:17], v1, s[32:35], 0 offen
    buffer_store_dword v18, v2, s[32:35], 0 offen
    """)
    stamp_flush(A, 0, 14)
    A.label("L_k1_end")
    A("s_endpgm")
    return A.L, kdesc(name, 256 if PROF else 96, 256 if PROF else 96)

ACC = 64
ACT = 128
RAW = 176
def tile_setup(A):
    A("""
    v_lshrrev_b32 v2, 6, v0
    v_and_b32 v1, 63, v0
    v_readfirstlane_b32 s40, v2
    s_and_b32 s3, s2, 7
    s_lshr_b32 s45, s2, 3
    s_lshr_b32 s41, s3, 2
    s_and_b32 s3, s3, 3
    s_lshl_b32 s42, s3, 5
    s_lshr_b32 s46, s45, 2
    s_lshl_b32 s46, s46, 2
    s_add_u32 s42, s42, s46
    s_and_b32 s43, s45, 3
    s_add_u32 s44, s42, s43
    s_lshl_b32 s43, s43, 5
    """)

def silu_pairs(A, pairs, areg, breg, bc, sK):
    pass

def weights_prologue(A, wf_srd, wv):
    for f in range(18):
        so = f"s{60+f//4}" if f//4 else "0"
        A(f"buffer_load_dwordx4 {a(4*f,4)}, v{wv}, {s(wf_srd,4)}, {so} offen offset:{1024*(f%4)}")

def main_loop(A, tag, conv, wf_srd, wv, rd):
    def read(setno, row, kcl, dx):
        off = kcl*2*PP + row*ROWP + dx*16
        A(f"ds_read_b128 {v(ACT+24*setno+4*row,4)}, v{rd} offset:{off}")
    for row in range(6): read(0,row,0,0)
    A("s_mov_b32 s47, 0")
    body = Asm()
    B = body
    def readB(setno, row, kcl, dx):
        off = kcl*2*PP + row*ROWP + dx*16
        B(f"ds_read_b128 {v(ACT+24*setno+4*row,4)}, v{rd} offset:{off}")
    B(f"s_cmp_eq_u32 s47, 3")
    B(f"s_cselect_b32 s{wf_srd+2}, 0, s{wf_srd+2}")
    B(f"v_add_u32 v{wv}, {18*1024}, v{wv}")
    for g in range(6):
        st = g&1
        ng = g+1; nk, ndx = ng//3, ng%3
        n=0
        for dy in range(3):
            f = g*3+dy
            B(f"s_waitcnt vmcnt(17)" + (" lgkmcnt(2)" if dy==0 else ""))
            for r in range(4):
                if n==7: B("s_waitcnt lgkmcnt(4)")
                acc = v(ACC+16*r,16); act = v(ACT+24*st+4*(r+dy),4); w = a(4*f,4)
                if conv==1: B(f"v_mfma_f32_32x32x16_bf16 {acc}, {w}, {act}, {acc}")
                else:       B(f"v_mfma_f32_32x32x16_bf16 {acc}, {act}, {w}, {acc}")
                if n%2==0: readB(1-st, n//2, nk, ndx)
                n+=1
            so = f"s{60+f//4}" if f//4 else "0"
            B(f"buffer_load_dwordx4 {a(4*f,4)}, v{wv}, {s(wf_srd,4)}, {so} offen offset:{1024*(f%4)}")
    B(f"v_add_u32 v{rd}, {4*PP}, v{rd}")
    B("s_add_u32 s47, s47, 1")
    B("s_cmp_lt_u32 s47, 4")
    A.label(f"L_{tag}_loop")
    A.L += body.L
    A(f"s_cbranch_scc1 L_{tag}_loop")
    bad = check_seq(body.L+body.L)
    assert not bad, bad

def silu_block8(A, xs, avs, bvs, T, out4, sconst):
    X=T; E=T+8
    for i,x in enumerate(xs):
        A(f"v_lshlrev_b32 v{X+2*i}, 16, v{x}")
        A(f"v_and_b32 v{X+2*i+1}, s{sconst}, v{x}")
    for i in range(4):
        (ar,bc),(br,_) = avs[i], bvs[i]
        if bc is None:
            A(f"v_pk_fma_f32 {v(X+2*i,2)}, {v(X+2*i,2)}, {v(ar,2)}, {v(br,2)}")
        else:
            base_a = ar & ~1; base_b = br & ~1
            sa, sb = ar&1, br&1
            A(f"v_pk_fma_f32 {v(X+2*i,2)}, {v(X+2*i,2)}, {v(base_a,2)}, {v(base_b,2)} op_sel:[0,{sa},{sb}] op_sel_hi:[1,{sa},{sb}]")
    for i in range(4):
        A(f"v_pk_mul_f32 {v(E+2*i,2)}, {v(X+2*i,2)}, {s(sconst+2,2)}")
    for i in range(8): A(f"v_exp_f32 v{E+i}, v{E+i}")
    for i in range(4):
        A(f"v_pk_add_f32 {v(E+2*i,2)}, {v(E+2*i,2)}, {s(sconst+4,2)}")
    for i in range(8): A(f"v_rcp_f32 v{E+i}, v{E+i}")
    for i in range(4):
        A(f"v_pk_mul_f32 {v(X+2*i,2)}, {v(X+2*i,2)}, {v(E+2*i,2)}")

def consts(A, sc):
    A(f"s_mov_b32 s{sc}, 0xffff0000")
    A(f"s_mov_b32 s{sc+2}, {hex(NEG_LOG2E)}")
    A(f"s_mov_b32 s{sc+3}, {hex(NEG_LOG2E)}")
    A(f"s_mov_b32 s{sc+4}, 1.0")
    A(f"s_mov_b32 s{sc+5}, 1.0")

def rowflags(A):
    for rr in range(6):
        A(f"s_add_i32 s{80+rr}, s42, {rr-1}")
        A(f"s_cmp_lt_u32 s{80+rr}, 128")
        A(f"s_cselect_b32 s{86+rr}, 1.0, 0")
        A(f"s_cselect_b32 s{80+rr}, s{80+rr}, s42")

SC = 70
def gen_k2():
    A = Asm()
    name="conv1_kernel"
    khead(A,name)
    A("""
    s_cmp_ge_u32 s2, 256
    s_cbranch_scc1 L_k2_end
    """)
    stamp(A, True)
    A("""
    s_load_dwordx2 s[4:5], s[0:1], 0
    s_load_dwordx4 s[8:11], s[0:1], 16
    s_load_dwordx2 s[12:13], s[0:1], 88
    """)
    tile_setup(A)
    consts(A, SC)
    for k in range(1,5): A(f"s_mov_b32 s{60+k}, {4096*k}")
    rowflags(A)
    A("s_waitcnt lgkmcnt(0)")
    srd(A,16,4,5,NX)
    srd(A,20,12,13,WS_LOW)
    srd(A,24,12,13,NX,WS_H)
    srd(A,28,8,9,256)
    srd(A,32,10,11,256)
    srd(A,36,12,13,WBYTES,WS_W1F)
    A("""
    v_and_b32 v3, 3, v1                 ; c
    v_lshrrev_b32 v4, 2, v1             ; (l>>2) 0..15
    s_and_b32 s48, s40, 1
    s_lshl_b32 s49, s48, 4
    v_add_u32 v4, s49, v4               ; q
    s_lshl_b32 s49, s48, 6
    s_lshl_b32 s50, s41, 7
    s_add_u32 s49, s49, s50
    v_add_u32 v5, s49, v1
    v_lshlrev_b32 v5, 3, v5
    buffer_load_dwordx2 v[6:7], v5, s[20:23], 0 offen
    v_lshlrev_b32 v5, 3, v4
    buffer_load_dwordx2 v[8:9], v5, s[28:31], 0 offen
    buffer_load_dwordx2 v[10:11], v5, s[32:35], 0 offen
    """)
    A("""
    s_lshl_b32 s49, s41, 22
    s_lshl_b32 s50, s43, 1
    s_add_u32 s49, s49, s50
    v_lshlrev_b32 v12, 17, v4
    v_lshl_add_u32 v12, v3, 4, v12
    v_add_u32 v12, s49, v12
    s_lshr_b32 s51, s40, 1              ; w>>1
    s_cmp_eq_u32 s51, 0
    """)
    for j in range(3):
        A(f"s_cselect_b32 s{52+j}, s{80+j}, s{83+j}")
        A(f"s_cselect_b32 s{55+j}, s{86+j}, s{89+j}")
    for j in range(3):
        A(f"s_lshl_b32 s{52+j}, s{52+j}, 8")
    for j in range(3):
        for m in range(4):
            A(f"s_add_u32 s3, s{52+j}, {32768*m}")
            A(f"buffer_load_dwordx4 {v(RAW+16*j+4*m,4)}, v12, s[16:19], s3 offen")
    for R in range(2):
        A(f"""
        s_lshl_b32 s3, s51, 2
        s_add_u32 s3, s3, {8*R}
        v_add_u32 v13, s3, v3              ; px12
        v_lshrrev_b32 v14, 1, v13          ; rr
        v_and_b32 v15, 1, v13              ; side
        v_min_u32 v16, 5, v14
        v_add_u32 v17, s42, v16
        v_subrev_u32 v17, 1, v17
        v_mul_u32_u24 v18, 33, v15
        v_add_u32 v18, s43, v18
        v_subrev_u32 v18, 1, v18
        v_cmp_gt_u32 vcc, 128, v17
        v_mov_b32 v20, s42
        v_cndmask_b32 v19, 0, 1.0, vcc
        v_cndmask_b32 v17, v20, v17, vcc
        v_cmp_gt_u32 vcc, 128, v18
        v_mov_b32 v20, s43
        v_cndmask_b32 v19, 0, v19, vcc
        v_cndmask_b32 v18, v20, v18, vcc
        v_cmp_gt_u32 vcc, 12, v13
        v_lshlrev_b32 v21, 17, v4
        v_lshl_add_u32 v21, v17, 8, v21
        v_lshl_add_u32 v21, v18, 1, v21
        s_lshl_b32 s3, s41, 22
        v_add_u32 v21, s3, v21
        v_mov_b32 v{22+R}, v19
        """)
        A(f"""
        v_lshrrev_b32 v24, 1, v4
        v_mul_u32_u24 v24, {PP}, v24
        v_mul_u32_u24 v25, 34, v16
        v_mul_u32_u24 v26, 33, v15
        v_add_u32 v25, v25, v26
        v_lshl_add_u32 v24, v25, 4, v24
        v_and_b32 v25, 1, v4
        v_lshl_add_u32 v24, v25, 3, v24
        v_mov_b32 v26, {16*PP}
        v_lshl_add_u32 v26, v1, 3, v26
        v_cndmask_b32 v{28+R}, v26, v24, vcc
        """)
        for m in range(4):
            A(f"s_mov_b32 s3, {32768*m}")
            A(f"buffer_load_short_d16_hi v{RAW+48+4*R+m}, v21, s[16:19], s3 offen")
    A(f"""
    s_lshl_b32 s3, s41, 9
    s_lshl_b32 s48, s40, 7
    s_add_u32 s3, s3, s48
    s_add_u32 s3, s3, {WS_EMB}
    v_lshrrev_b32 v30, 5, v1
    v_lshlrev_b32 v30, 4, v30
    v_add_u32 v30, s3, v30
    """)
    for r in range(4):
        for i in range(4):
            A(f"buffer_load_dwordx4 {v(ACC+16*r+4*i,4)}, v30, s[20:23], 0 offen offset:{32*i}")
    A(f"""
    s_lshr_b32 s3, s2, 3
    s_mul_i32 s3, s3, {72*128}
    v_lshlrev_b32 v31, 7, v0
    v_add_u32 v31, s3, v31
    v_mov_b32 v32, 0x7ffffff0
    v_cmp_gt_u32 vcc, 72, v0
    s_mul_i32 s3, s40, {72*1024}
    v_lshlrev_b32 v34, 4, v1
    v_cndmask_b32 v31, v32, v31, vcc
    v_add_u32 v34, s3, v34
    buffer_load_dword v33, v31, s[36:39], 0 offen
    """)
    WV=34
    weights_prologue(A,36,WV)
    stamp(A)
    A("s_waitcnt vmcnt(55)")
    stamp(A)
    row_allreduce(A,[6,7])
    swap_add(A,[6,7],[35,36],16)
    A(f"""
    v_mul_f32 v6, {fhex(INV_N)}, v6        ; mean
    v_mul_f32 v7, {fhex(INV_N)}, v7        ; E[x^2]
    v_fma_f32 v7, -v6, v6, v7
    v_max_f32 v7, 0, v7
    v_add_f32 v7, {fhex(1e-5)}, v7
    v_rsq_f32 v7, v7
    v_lshlrev_b32 v40, 16, v8
    v_and_b32 v41, s{SC}, v8
    v_lshlrev_b32 v42, 16, v9
    v_and_b32 v43, s{SC}, v9
    v_lshlrev_b32 v44, 16, v10
    v_and_b32 v45, s{SC}, v10
    v_lshlrev_b32 v46, 16, v11
    v_and_b32 v47, s{SC}, v11
    """)
    for m in range(4): A(f"v_mul_f32 v{40+m}, v{40+m}, v7")
    for m in range(4): A(f"v_fma_f32 v{44+m}, -v6, v{40+m}, v{44+m}")
    A(f"""
    v_lshrrev_b32 v35, 1, v4
    v_mul_u32_u24 v35, {PP}, v35
    v_lshl_add_u32 v35, v3, 7, v35
    v_and_b32 v36, 1, v4
    v_lshl_add_u32 v35, v36, 3, v35
    s_mul_i32 s3, s51, {3*ROWP}
    s_add_u32 s3, s3, 16
    v_add_u32 v35, s3, v35
    """)
    T=2
    T=48
    for j in range(3):
        A(f"s_waitcnt vmcnt({55-4*(j+1)})")
        for m in range(4): A(f"v_mul_f32 v{8+m}, s{55+j}, v{40+m}")
        for m in range(4): A(f"v_mul_f32 v{12+m}, s{55+j}, v{44+m}")
        for d in range(4):
            xs=[RAW+16*j+4*m+d for m in range(4)]
            silu_block8(A, xs, [(8+m,1) for m in range(4)], [(12+m,1) for m in range(4)], T, None, SC)
            A(f"v_cvt_pk_bf16_f32 v16, v{T+0}, v{T+2}")
            A(f"v_cvt_pk_bf16_f32 v17, v{T+4}, v{T+6}")
            A(f"v_cvt_pk_bf16_f32 v18, v{T+1}, v{T+3}")
            A(f"v_cvt_pk_bf16_f32 v19, v{T+5}, v{T+7}")
            A(f"ds_write_b64 v35, v[16:17] offset:{j*ROWP+32*d}")
            A(f"ds_write_b64 v35, v[18:19] offset:{j*ROWP+32*d+16}")
    for R in range(2):
        A(f"s_waitcnt vmcnt({55-12-4*(R+1)})")
        for m in range(4): A(f"v_mul_f32 v{8+m}, v{22+R}, v{40+m}")
        for m in range(4): A(f"v_mul_f32 v{12+m}, v{22+R}, v{44+m}")
        x=RAW+48+4*R
        for m in range(4): A(f"v_fma_f32 v{T+m}, v{x+m}, v{8+m}, v{12+m}")
        for m in range(4): A(f"v_mul_f32 v{T+4+m}, s{SC+2}, v{T+m}")
        for m in range(4): A(f"v_exp_f32 v{T+4+m}, v{T+4+m}")
        for m in range(4): A(f"v_add_f32 v{T+4+m}, 1.0, v{T+4+m}")
        for m in range(4): A(f"v_rcp_f32 v{T+4+m}, v{T+4+m}")
        for m in range(4): A(f"v_mul_f32 v{T+m}, v{T+m}, v{T+4+m}")
        A(f"v_cvt_pk_bf16_f32 v16, v{T+0}, v{T+1}")
        A(f"v_cvt_pk_bf16_f32 v17, v{T+2}, v{T+3}")
        A(f"ds_write_b64 v{28+R}, v[16:17]")
    A(f"""
    v_and_b32 v2, 31, v1
    v_lshrrev_b32 v3, 5, v1
    v_mul_u32_u24 v3, {PP}, v3
    v_lshl_add_u32 v2, v2, 4, v3
    s_waitcnt lgkmcnt(0)
    s_barrier
    """)
    stamp(A)
    main_loop(A,"k2",1,36,WV,2)
    stamp(A)
    A("s_nop 7"); A("s_nop 7")
    S0,S1,Q0,Q1 = 4,6,8,10
    for r in (4,5,6,7,8,9,10,11): A(f"v_mov_b32 v{r}, 0")
    for k in range(32):
        p = v(ACC+2*k,2)
        sreg = S0 if k%2==0 else S1
        qreg = Q0 if k%2==0 else Q1
        A(f"v_pk_add_f32 {v(sreg,2)}, {v(sreg,2)}, {p}")
        A(f"v_pk_fma_f32 {v(qreg,2)}, {p}, {p}, {v(qreg,2)}")
    A("v_pk_add_f32 v[4:5], v[4:5], v[6:7]")
    A("v_pk_add_f32 v[8:9], v[8:9], v[10:11]")
    A("v_add_f32 v4, v4, v5")
    A("v_add_f32 v5, v8, v9")
    P=128
    for r in range(4):
        for i in range(4):
            A(f"v_cvt_pk_bf16_f32 v{P+8*r+2*i}, v{ACC+16*r+4*i}, v{ACC+16*r+4*i+1}")
            A(f"v_cvt_pk_bf16_f32 v{P+8*r+2*i+1}, v{ACC+16*r+4*i+2}, v{ACC+16*r+4*i+3}")
    row_allreduce(A,[4,5])
    for r in range(4):
        for m in range(2):
            A(f"v_permlane32_swap_b32 v{P+8*r+4*m}, v{P+8*r+4*m+2}")
            A(f"v_permlane32_swap_b32 v{P+8*r+4*m+1}, v{P+8*r+4*m+3}")
    A(f"""
    s_lshl_b32 s3, s41, 4
    s_lshl_b32 s48, s40, 2
    s_add_u32 s3, s3, s48
    s_lshl_b32 s3, s3, 14
    s_lshl_b32 s48, s42, 7
    s_add_u32 s3, s3, s48
    s_add_u32 s3, s3, s43
    v_lshrrev_b32 v12, 5, v1
    v_lshlrev_b32 v12, 14, v12
    v_and_b32 v13, 31, v1
    v_add_u32 v12, v12, v13
    v_add_u32 v12, s3, v12
    v_lshlrev_b32 v12, 4, v12
    s_mov_b32 s48, 4096
    s_mov_b32 s49, 524288
    s_mov_b32 s50, 528384
    """)
    for r in range(4):
        for m in range(2):
            so = {(0,0):"0",(1,0):"s48",(0,1):"s49",(1,1):"s50"}[(r>>1,m)]
            A(f"buffer_store_dwordx4 {v(P+8*r+4*m,4)}, v12, s[24:27], {so} offen offset:{2048*(r&1)}")
    swap_add(A,[4,5],[6,7],16)
    swap_add(A,[4,5],[6,7],32)
    A(f"""
    s_lshl_b32 s3, s41, 3
    s_lshl_b32 s48, s40, 1
    s_add_u32 s3, s3, s48
    s_lshl_b32 s3, s3, 7
    s_add_u32 s3, s3, s44
    s_lshl_b32 s3, s3, 2
    s_add_u32 s3, s3, {WS_STATS2}
    v_mov_b32 v12, s3
    v_mov_b32 v13, 0x7ffffff0
    v_cmp_eq_u32 vcc, 0, v1
    v_cndmask_b32 v12, v13, v12, vcc
    buffer_store_dword v4, v12, s[20:23], 0 offen
    buffer_store_dword v5, v12, s[20:23], 0 offen offset:512
    """)
    stamp_flush(A, 1, 12)
    A.label("L_k2_end")
    A("s_endpgm")
    return A.L, kdesc(name, 256+72, 256)

def gen_k3():
    A = Asm()
    name="conv2_kernel"
    khead(A,name)
    A("""
    s_cmp_ge_u32 s2, 256
    s_cbranch_scc1 L_k3_end
    """)
    stamp(A, True)
    A("""
    s_load_dwordx2 s[4:5], s[0:1], 0
    s_load_dwordx4 s[8:11], s[0:1], 48
    s_load_dwordx2 s[14:15], s[0:1], 72
    s_load_dwordx2 s[12:13], s[0:1], 88
    """)
    tile_setup(A)
    consts(A, SC)
    for k in range(1,5): A(f"s_mov_b32 s{60+k}, {4096*k}")
    rowflags(A)
    A("s_waitcnt lgkmcnt(0)")
    srd(A,16,4,5,NX)
    srd(A,20,12,13,WS_LOW)
    srd(A,24,12,13,NX,WS_H)
    srd(A,28,8,9,256)
    srd(A,32,10,11,256)
    srd(A,36,12,13,WBYTES,WS_W2F)
    srd(A,76,14,15,NX)
    A(f"""
    v_lshrrev_b32 v3, 3, v1
    v_lshlrev_b32 v3, 9, v3
    v_and_b32 v4, 7, v1
    v_lshl_add_u32 v3, v4, 4, v3
    s_lshl_b32 s3, s41, 12
    s_add_u32 s3, s3, {WS_STATS2}
    v_add_u32 v3, s3, v3
    """)
    for j in range(4):
        A(f"buffer_load_dwordx4 {v(4+4*j,4)}, v3, s[20:23], 0 offen offset:{128*j}")
    A("""
    v_lshrrev_b32 v20, 2, v1            ; oct
    v_and_b32 v21, 3, v1                ; sub
    v_lshlrev_b32 v22, 4, v20
    buffer_load_dwordx4 v[24:27], v22, s[28:31], 0 offen
    buffer_load_dwordx4 v[28:31], v22, s[32:35], 0 offen
    """)
    A("""
    s_lshl_b32 s3, s41, 18
    s_lshl_b32 s48, s40, 3
    s_add_u32 s3, s3, s48
    s_add_u32 s3, s3, s43
    v_lshlrev_b32 v22, 14, v20
    v_add_u32 v22, v22, v21
    v_add_u32 v22, s3, v22
    v_lshlrev_b32 v22, 4, v22
    """)
    for rr in range(6):
        A(f"s_lshl_b32 s3, s{80+rr}, 11")
        for e in range(2):
            A(f"buffer_load_dwordx4 {v(RAW+4*(2*rr+e),4)}, v22, s[24:27], s3 offen offset:{64*e}")
    A(f"""
    s_lshl_b32 s3, s40, 2
    v_add_u32 v32, s3, v21              ; px12
    v_lshrrev_b32 v33, 1, v32           ; rr
    v_and_b32 v34, 1, v32               ; side
    v_min_u32 v33, 5, v33
    v_add_u32 v35, s42, v33
    v_subrev_u32 v35, 1, v35            ; y
    v_mul_u32_u24 v36, 33, v34
    v_add_u32 v36, s43, v36
    v_subrev_u32 v36, 1, v36            ; col
    v_cmp_gt_u32 vcc, 128, v35
    v_mov_b32 v37, s42
    v_cndmask_b32 v38, 0, 1.0, vcc
    v_cndmask_b32 v35, v37, v35, vcc
    v_cmp_gt_u32 vcc, 128, v36
    v_mov_b32 v37, s43
    v_cndmask_b32 v38, 0, v38, vcc      ; flag
    v_cndmask_b32 v36, v37, v36, vcc
    s_lshl_b32 s3, s41, 18
    v_lshlrev_b32 v37, 14, v20
    v_lshl_add_u32 v37, v35, 7, v37
    v_add_u32 v37, v37, v36
    v_add_u32 v37, s3, v37
    v_lshlrev_b32 v37, 4, v37
    buffer_load_dwordx4 {v(RAW+48,4)}, v37, s[24:27], 0 offen
    v_cmp_gt_u32 vcc, 12, v32
    v_mul_u32_u24 v39, {PP}, v20
    v_mul_u32_u24 v40, 34, v33
    v_mul_u32_u24 v41, 33, v34
    v_add_u32 v40, v40, v41
    v_lshl_add_u32 v40, v40, 4, v39
    v_mov_b32 v41, {16*PP}
    v_lshl_add_u32 v41, v1, 4, v41
    v_cndmask_b32 v40, v41, v40, vcc
    s_lshl_b32 s3, s40, 7
    s_add_u32 s3, s3, 16
    v_lshl_add_u32 v39, v21, 4, v39
    v_add_u32 v39, s3, v39
    """)
    A(f"""
    s_lshl_b32 s3, s41, 7
    s_lshl_b32 s48, s40, 5
    s_add_u32 s3, s3, s48
    s_lshl_b32 s3, s3, 15
    s_lshl_b32 s48, s42, 8
    s_add_u32 s3, s3, s48
    s_lshl_b32 s48, s43, 1
    s_add_u32 s3, s3, s48
    v_and_b32 v42, 31, v1
    v_lshlrev_b32 v42, 15, v42
    v_lshrrev_b32 v43, 5, v1
    v_lshl_add_u32 v42, v43, 4, v42
    v_add_u32 v42, s3, v42
    """)
    XR = ACT
    for r in range(4):
        for m in range(2):
            A(f"buffer_load_dwordx4 {v(XR+8*r+4*m,4)}, v42, s[16:19], 0 offen offset:{256*r+32*m}")
    A(f"""
    s_lshr_b32 s3, s2, 3
    s_mul_i32 s3, s3, {72*128}
    v_lshlrev_b32 v43, 7, v0
    v_add_u32 v43, s3, v43
    v_mov_b32 v44, 0x7ffffff0
    v_cmp_gt_u32 vcc, 72, v0
    s_mul_i32 s3, s40, {72*1024}
    v_lshlrev_b32 v46, 4, v1
    v_cndmask_b32 v43, v44, v43, vcc
    v_add_u32 v46, s3, v46
    buffer_load_dword v45, v43, s[36:39], 0 offen
    """)
    WV=46
    weights_prologue(A,36,WV)
    stamp(A)
    A("s_waitcnt vmcnt(42)")
    stamp(A)
    for j in range(1,4):
        for d in range(4): A(f"v_add_f32 v{4+d}, v{4+d}, v{4+4*j+d}")
    A("v_add_f32 v4, v4, v5"); A("v_add_f32 v6, v6, v7"); A("v_add_f32 v4, v4, v6")
    A("v_add_f32_dpp v4, v4, v4 quad_perm:[1,0,3,2] row_mask:0xf bank_mask:0xf")
    A("v_add_f32_dpp v4, v4, v4 quad_perm:[2,3,0,1] row_mask:0xf bank_mask:0xf")
    A("v_add_f32_dpp v4, v4, v4 row_half_mirror row_mask:0xf bank_mask:0xf")
    A("v_mov_b32_dpp v5, v4 row_ror:8 row_mask:0xf bank_mask:0xf")
    A(f"""
    v_and_b32 v6, 8, v1
    v_cmp_eq_u32 vcc, 0, v6
    v_cndmask_b32 v6, v5, v4, vcc       ; sum
    v_cndmask_b32 v7, v4, v5, vcc       ; sumsq
    v_mul_f32 v6, {fhex(INV_N)}, v6
    v_mul_f32 v7, {fhex(INV_N)}, v7
    v_fma_f32 v7, -v6, v6, v7
    v_max_f32 v7, 0, v7
    v_add_f32 v7, {fhex(1e-5)}, v7
    v_rsq_f32 v7, v7
    s_waitcnt vmcnt(40)
    """)
    for d in range(4):
        A(f"v_lshlrev_b32 v{48+2*d}, 16, v{24+d}")
        A(f"v_and_b32 v{49+2*d}, s{SC}, v{24+d}")
        A(f"v_lshlrev_b32 v{56+2*d}, 16, v{28+d}")
        A(f"v_and_b32 v{57+2*d}, s{SC}, v{28+d}")
    for k in range(8): A(f"v_mul_f32 v{48+k}, v{48+k}, v7")
    for k in range(8): A(f"v_fma_f32 v{56+k}, -v6, v{48+k}, v{56+k}")
    T=4; EA=24; EB=232
    def block(raw, flag, addr, off):
        for k in range(8): A(f"v_mul_f32 v{EA+k}, {flag}, v{48+k}")
        for k in range(8): A(f"v_mul_f32 v{EB+k}, {flag}, v{56+k}")
        return
    def trans(raw, addr, off):
        silu_block8(A,[raw+d for d in range(4)],[(EA+2*d,None) for d in range(4)],[(EB+2*d,None) for d in range(4)],T,None,SC)
        for d in range(4): A(f"v_cvt_pk_bf16_f32 v{20+d}, v{T+2*d}, v{T+2*d+1}")
        A(f"ds_write_b128 v{addr}, v[20:23] offset:{off}")
    for rr in range(6):
        A(f"s_waitcnt vmcnt({40-2*(rr+1)})")
        if rr in (0,1,5):
            block(None, f"s{86+rr}", None, None)
        for e in range(2):
            trans(RAW+4*(2*rr+e), 39, rr*ROWP+64*e)
    A("s_waitcnt vmcnt(27)")
    block(None,"v38",None,None)
    trans(RAW+48, 40, 0)
    A("s_waitcnt vmcnt(19)")
    for r in range(4):
        for m in range(2):
            b=XR+8*r+4*m
            A(f"v_permlane32_swap_b32 v{b}, v{b+2}")
            A(f"v_permlane32_swap_b32 v{b+1}, v{b+3}")
    for r in range(4):
        for i in range(4):
            for k in range(2):
                src=XR+8*r+2*i+k
                A(f"v_lshlrev_b32 v{ACC+16*r+4*i+2*k}, 16, v{src}")
                A(f"v_and_b32 v{ACC+16*r+4*i+2*k+1}, s{SC}, v{src}")
    A(f"""
    v_and_b32 v2, 31, v1
    v_lshrrev_b32 v3, 5, v1
    v_mul_u32_u24 v3, {PP}, v3
    v_lshl_add_u32 v2, v2, 4, v3
    s_waitcnt lgkmcnt(0)
    s_barrier
    """)
    stamp(A)
    main_loop(A,"k3",2,36,WV,2)
    stamp(A)
    A("s_nop 7"); A("s_nop 7")
    P=128
    for r in range(4):
        for i in range(4):
            A(f"v_cvt_pk_bf16_f32 v{P+8*r+2*i}, v{ACC+16*r+4*i}, v{ACC+16*r+4*i+1}")
            A(f"v_cvt_pk_bf16_f32 v{P+8*r+2*i+1}, v{ACC+16*r+4*i+2}, v{ACC+16*r+4*i+3}")
    for r in range(4):
        for m in range(2):
            A(f"v_permlane32_swap_b32 v{P+8*r+4*m}, v{P+8*r+4*m+2}")
            A(f"v_permlane32_swap_b32 v{P+8*r+4*m+1}, v{P+8*r+4*m+3}")
    for r in range(4):
        for m in range(2):
            A(f"buffer_store_dwordx4 {v(P+8*r+4*m,4)}, v42, s[76:79], 0 offen offset:{256*r+32*m}")
    stamp_flush(A, 2, 12)
    A.label("L_k3_end")
    A("s_endpgm")
    return A.L, kdesc(name,256+72,256)

LDS_CONV = 16*PP + 1024 + 6*PP

HEADER = open("standalone__adm_resblock__diffusion.s.ref").read().split("; Override launch")[0]

def build(path):
    out = HEADER
    out += f"; @launch kernel=prep_kernel grid=(256,1,1) block=(256,1,1) lds=64\n"
    out += f"; @launch kernel=conv1_kernel grid=(256,1,1) block=(256,1,1) lds={LDS_CONV}\n"
    out += f"; @launch kernel=conv2_kernel grid=(256,1,1) block=(256,1,1) lds={LDS_CONV}\n"
    out += '.amdgcn_target "amdgcn-amd-amdhsa--gfx950"\n.text\n'
    for g in (gen_k1, gen_k2, gen_k3):
        L, kd = g()
        L = fix_hazards(L)
        out += "\n".join(L) + "\n" + kd
    open(path,"w").write(out)

if __name__=="__main__":
    PROF = "--prof" in sys.argv
    DBGMODE = "--dbg" in sys.argv
    build(sys.argv[1] if len(sys.argv)>1 else "standalone__adm_resblock__diffusion.s")
```

```python
import re
from asmlib import Ins

class It:
    __slots__=("text","needs","tag","cost","raw")
    def __init__(self, text, needs=(), tag=None, cost=None, raw=False):
        self.text=text.strip(); self.needs=tuple(needs); self.tag=tag; self.raw=raw
        self.cost = cost if cost is not None else est_cost(self.text)

def est_cost(t):
    op=t.split()[0] if t.split() else ""
    if op.endswith(":") or op.startswith(".") or op=="": return 0
    if op.startswith(("v_exp","v_rcp","v_rsq","v_log","v_sqrt")): return 8
    if op.startswith("v_mfma"): return 8
    if op.startswith(("v_fma_f32","v_cvt_pk","v_dot2_","v_perm_b32","v_lshl_or","v_lshl_add","v_and_or","v_or3","v_add3","v_pk_","v_med3","v_mul_lo")): return 5
    if op.startswith("ds_write_b64"): return 6
    if op.startswith("ds_write_b128"): return 10
    if op.startswith(("buffer_","global_")): return 6
    return 4

def kind_of(t):
    op=t.split()[0] if t.split() else ""
    if op.startswith(("buffer_load","buffer_store","global_load","global_store","buffer_atomic","global_atomic")): return "vm"
    if op.startswith("ds_"): return "lg"
    if op.startswith(("s_load","s_memtime","s_memrealtime","s_buffer_load")): return "sm"
    return None

class Prog:
    def __init__(self):
        self.items=[]
    def I(self, text, needs=(), tag=None, cost=None):
        it=It(text,needs,tag,cost); self.items.append(it); return it
    def __call__(self, s):
        for ln in s.split("\n"):
            t=ln.split(";")[0].strip()
            if t: self.items.append(It(t))
    def raw(self, s):
        for ln in s.split("\n"):
            t=ln.split(";")[0].strip()
            if t: self.items.append(It(t,raw=True))
    def add(self, it): self.items.append(it)
    def ext(self, its): self.items.extend(its)
    def clear_vm(self): self.items.append(It("@clear_vm"))
    def clear_lg(self): self.items.append(It("@clear_lg"))

def resolve(items, verbose=False):
    out=[]; vmq=[]; lgq=[]; smem=False; seen=set(); done=set()
    def pop(q,n):
        while len(q)>n:
            t=q.pop(0)
            if t is not None: done.add(t)
    for it in items:
        t=it.text
        if t=="@clear_vm": pop(vmq,0); continue
        if t=="@clear_lg": pop(lgq,0); smem=False; continue
        if it.raw:
            out.append(t if t.endswith(":") else "    "+t); continue
        nv=None; nl=None
        for tg in it.needs:
            if tg in done: continue
            if tg in vmq:
                n=len(vmq)-1-vmq.index(tg); nv=n if nv is None else min(nv,n)
            elif tg in lgq:
                n=len(lgq)-1-lgq.index(tg)
                if smem: n=0
                nl=n if nl is None else min(nl,n)
            else:
                raise AssertionError(f"need {tg} never issued before: {t}")
        if nv is not None or nl is not None:
            w="s_waitcnt"
            if nv is not None:
                nv=min(nv,63); w+=f" vmcnt({nv})"; pop(vmq,nv)
            if nl is not None:
                nl=min(nl,15); w+=f" lgkmcnt({nl})"; pop(lgq,nl)
                if nl==0: smem=False
            out.append("    "+w)
        if t.startswith("s_waitcnt"):
            m=re.search(r"vmcnt\((\d+)\)",t)
            if m: pop(vmq,int(m.group(1)))
            m=re.search(r"lgkmcnt\((\d+)\)",t)
            if m:
                n=int(m.group(1))
                if n==0: pop(lgq,0); smem=False
                elif not smem: pop(lgq,n)
        k=kind_of(t)
        if it.tag is not None:
            assert it.tag not in seen, it.tag
            seen.add(it.tag)
            assert k in ("vm","lg"), t
        if k=="vm": vmq.append(it.tag)
        elif k=="lg": lgq.append(it.tag)
        elif k=="sm": smem=True
        if t=="@nop": continue
        out.append(t if (t.endswith(":") or t.startswith(".")) else "    "+t)
    return out

def spread(nslots, fillers, start=0, end=None):
    if end is None: end=nslots
    gaps=[[] for _ in range(nslots)]
    tot=sum(f.cost for f in fillers)
    n=end-start
    acc=0; g=start
    for f in fillers:
        pos=start+int((acc+f.cost*0.5)*n/max(tot,1))
        pos=min(max(pos,g),end-1)
        gaps[pos].append(f); g=pos; acc+=f.cost
    return gaps
```

```python
import sys, struct
sys.path.insert(0, "tools")
from asmlib import *
from prog import *

NAME = "standalone__adm_resblock__diffusion_kernel"
WS_E   = 0x0
WS_G1  = 0x1000
G2_OFF = 0x4000
WS_EMB = 0x9000
WS_LOW = 0x10000
WS_WF  = 0x10000
WF_B   = 589824
WS_H   = 0x200000
WS_PROF= 0x2000000
NX = 2*128*128*128*2
ROWP = 656
PP = 6*ROWP
TILE1 = 0
TILE2 = 16*PP
SCR = 2*16*PP
EMBP = SCR
ES = SCR+64
LDS_SIZE = SCR + 1024
OOB = 0x7ffffff0
def fhex(f): return "0x%08x" % struct.unpack("<I", struct.pack("<f", f))[0]
LOG2E = 1.4426950408889634
LN2 = 0.6931471805599453
INV_N = 1.0/524288.0
EPS = 1e-5

SX,SWS,SWF,SH,SO,SA,SB = 28,32,36,40,44,48,52
sW,sBt,sRow0,sCol0,sT,sCnt = 70,71,72,73,74,75
S_G2=60; S4K=61
S32K,S64K,S96K = 65,66,67
S128K,S192K,S256K,S512K,S768K,S516K,SW2 = 68,69,76,77,78,79,80
SONE=82; SMASK=84; SNL=86; SNLN=88
vL=1; vRD=2; vWV=3; vMA=4; vMB=5; vK1=6; vT1W=7; vTag=8; vGpub=9; vGpoll=10; vEpub=11; vEpoll=12
vXO=13; vHS=14; vHSm=15; vT2W=16; vHG=17; vHW=20; vHM=23; vPub=26
vSR=30; vSC=31
B1=32; TE=48; TP=56
ACC1=64; U=128; ACC2=128
HR=192; A2=216; B2=232; XR=192; G2R=240; EP=128; EG=144
RING=0; ACT=72

PROF=False; DBG=False
_st=[0]
def stamp(P):
    if not PROF: return
    k=_st[0]; _st[0]+=1
    P("s_memrealtime s[92:93]")
    P("s_memtime s[94:95]")
    P("s_waitcnt lgkmcnt(0)")
    P(f"v_writelane_b32 v{vSR}, s92, {k}")
    P(f"v_writelane_b32 v{vSC}, s94, {k}")

def pk(r): return f"v[{r}:{r+1}]"
def allreduce(P, regs, tmps):
    for sh in (8,4,2,1):
        for r in regs:
            P(f"v_add_f32_dpp v{r}, v{r}, v{r} row_ror:{sh} row_mask:0xf bank_mask:0xf")
    for which in (16,32):
        for r,t in zip(regs,tmps): P(f"v_mov_b32 v{t}, v{r}")
        for r,t in zip(regs,tmps): P(f"v_permlane{which}_swap_b32 v{r}, v{t}")
        for r,t in zip(regs,tmps): P(f"v_add_f32 v{r}, v{r}, v{t}")

def srd(P, r, lo, size, off=None):
    if off is None:
        P(f"s_mov_b32 s{r}, s{lo}"); P(f"s_mov_b32 s{r+1}, s{lo+1}")
    else:
        P(f"s_add_u32 s{r}, s{lo}, {off}"); P(f"s_addc_u32 s{r+1}, s{lo+1}, 0")
    P(f"s_mov_b32 s{r+2}, {size}"); P(f"s_mov_b32 s{r+3}, 0x20000")

def rawreg(i,m,d):
    b=U+32*i+8*m
    if i==0 and m==0: return [b+7,b+4,b+5,b+6][d]
    return b+4+d

def poll(P, name, dat, soff, pre_issued=True):
    def issue():
        return [f"buffer_load_dwordx4 {v(dat,4)}, v{vGpoll}, {s(SWS,4)}, {soff} offen sc1",
                f"buffer_load_dwordx4 {v(dat+4,4)}, v{vGpoll}, {s(SWS,4)}, {soff} offen offset:16 sc1"]
    P(f"s_mov_b32 s{sCnt}, 0x4000")
    P(f"L_{name}_chk:")
    P("s_waitcnt vmcnt(0)")
    P(f"v_xor_b32 v60, v{vTag}, v{dat+1}")
    P(f"v_xor_b32 v61, v{vTag}, v{dat+3}")
    P(f"v_xor_b32 v62, v{vTag}, v{dat+5}")
    P(f"v_xor_b32 v63, v{vTag}, v{dat+7}")
    P("v_or3_b32 v60, v60, v61, v62")
    P("v_or_b32 v60, v60, v63")
    P("v_cmp_ne_u32 vcc, 0, v60")
    P(f"s_cbranch_vccz L_{name}_ok")
    P(f"s_sub_u32 s{sCnt}, s{sCnt}, 1")
    P(f"s_cbranch_scc1 L_{name}_ok")
    for t in issue(): P.raw(t)
    P(f"s_branch L_{name}_chk")
    P(f"L_{name}_ok:")
    P.clear_vm()
def poll_issue(P, dat, soff):
    P(f"buffer_load_dwordx4 {v(dat,4)}, v{vGpoll}, {s(SWS,4)}, {soff} offen sc1")
    P(f"buffer_load_dwordx4 {v(dat+4,4)}, v{vGpoll}, {s(SWS,4)}, {soff} offen offset:16 sc1")

def silu_core(F, X, E, packed, coef):
    n=len(X)
    if packed:
        for k in range(0,n,2):
            (a_,b_)=coef(k)
            sa,sb=a_&1,b_&1
            F.append(It(f"v_pk_fma_f32 {pk(X[k])}, {pk(X[k])}, {pk(a_&~1)}, {pk(b_&~1)} op_sel:[0,{sa},{sb}] op_sel_hi:[1,{sa},{sb}]"))
        for k in range(n): F.append(It(f"v_exp_f32 v{E+k}, v{X[k]}"))
        for k in range(0,n,2): F.append(It(f"v_pk_add_f32 {pk(E+k)}, {pk(E+k)}, {s(SONE,2)}"))
        for k in range(n): F.append(It(f"v_rcp_f32 v{E+k}, v{E+k}"))
        for k in range(0,n,2): F.append(It(f"v_pk_mul_f32 {pk(X[k])}, {pk(X[k])}, {pk(E+k)}"))
    else:
        for k in range(n):
            (a_,b_)=coef(k)
            F.append(It(f"v_fma_f32 v{X[k]}, v{X[k]}, v{a_}, v{b_}"))
        for k in range(n): F.append(It(f"v_exp_f32 v{E+k}, v{X[k]}"))
        for k in range(n): F.append(It(f"v_add_f32 v{E+k}, 1.0, v{E+k}"))
        for k in range(n): F.append(It(f"v_rcp_f32 v{E+k}, v{E+k}"))
        for k in range(n): F.append(It(f"v_mul_f32 v{X[k]}, v{X[k]}, v{E+k}"))

def t1_fill(i, packed=False):
    F=[]
    for kp in range(4):
        X=[U+32*i+8*m+2*kp+kk for m in range(4) for kk in range(2)]
        silu_core(F, X, TE, packed, lambda k:(vK1, B1+4*i+k//2))
        for kk in range(2):
            F.append(It(f"v_cvt_pk_bf16_f32 v{TP+2*kk}, v{X[0+kk]}, v{X[2+kk]}"))
            F.append(It(f"v_cvt_pk_bf16_f32 v{TP+2*kk+1}, v{X[4+kk]}, v{X[6+kk]}"))
        for kk in range(2):
            k=2*kp+kk
            if k in (1,2):
                mk = vMA if k==1 else vMB
                F.append(It(f"v_and_b32 v{TP+2*kk}, v{TP+2*kk}, v{mk}"))
                F.append(It(f"v_and_b32 v{TP+2*kk+1}, v{TP+2*kk+1}, v{mk}"))
            tag=("Tw",0,i) if k==7 else None
            F.append(It(f"ds_write_b64 v{vT1W}, {pk(TP+2*kk)} offset:{i*PP+16*k}", tag=tag))
    return F

def t2_interior(i, packed=False):
    F=[]
    for rp in range(2):
        if packed:
            X=[ACC1+16*(2*rp+rr)+4*i+j for rr in range(2) for j in range(4)]
            n=8
            for k in range(0,n,2):
                j=k&3
                F.append(It(f"v_pk_fma_f32 {pk(X[k])}, {pk(X[k])}, {pk(A2+4*i+j)}, {pk(B2+4*i+j)}"))
            for k in range(n): F.append(It(f"v_exp_f32 v{TE+k}, v{X[k]}"))
            for k in range(0,n,2): F.append(It(f"v_pk_add_f32 {pk(TE+k)}, {pk(TE+k)}, {s(SONE,2)}"))
            for k in range(n): F.append(It(f"v_rcp_f32 v{TE+k}, v{TE+k}"))
            for k in range(0,n,2): F.append(It(f"v_pk_mul_f32 {pk(X[k])}, {pk(X[k])}, {pk(TE+k)}"))
        else:
            X=[ACC1+16*(2*rp+rr)+4*i+j for rr in range(2) for j in range(4)]
            silu_core(F, X, TE, False, lambda k:(A2+4*i+(k&3), B2+4*i+(k&3)))
        for rr in range(2):
            F.append(It(f"v_cvt_pk_bf16_f32 v{TP+2*rr}, v{X[4*rr]}, v{X[4*rr+1]}"))
            F.append(It(f"v_cvt_pk_bf16_f32 v{TP+2*rr+1}, v{X[4*rr+2]}, v{X[4*rr+3]}"))
        for rr in range(2):
            F.append(It(f"ds_write_b64 v{vT2W}, {pk(TP+2*rr)} offset:{i*PP+(2*rp+rr)*ROWP}"))
    return F
def t2_halo(i, packed=False):
    F=[]
    for ks in ((0,1),(2,)):
        X=[]
        for n,k in enumerate(ks):
            raw=HR+6*i+2*k
            for d in range(2):
                x0=32+4*n+2*d
                F.append(It(f"v_lshlrev_b32 v{x0}, 16, v{raw+d}", needs=[("halo",i,k)]))
                F.append(It(f"v_and_b32 v{x0+1}, s{SMASK}, v{raw+d}"))
                X+= [x0,x0+1]
        n=len(X)
        if packed:
            for k in range(0,n,2):
                j=k&3
                F.append(It(f"v_pk_fma_f32 {pk(X[k])}, {pk(X[k])}, {pk(A2+4*i+j)}, {pk(B2+4*i+j)}"))
            for k in range(n): F.append(It(f"v_exp_f32 v{TE+k}, v{X[k]}"))
            for k in range(0,n,2): F.append(It(f"v_pk_add_f32 {pk(TE+k)}, {pk(TE+k)}, {s(SONE,2)}"))
            for k in range(n): F.append(It(f"v_rcp_f32 v{TE+k}, v{TE+k}"))
            for k in range(0,n,2): F.append(It(f"v_pk_mul_f32 {pk(X[k])}, {pk(X[k])}, {pk(TE+k)}"))
        else:
            silu_core(F, X, TE, False, lambda k:(A2+4*i+(k&3), B2+4*i+(k&3)))
        for nn,k in enumerate(ks):
            F.append(It(f"v_cvt_pk_bf16_f32 v{TP+2*nn}, v{X[4*nn]}, v{X[4*nn+1]}"))
            F.append(It(f"v_cvt_pk_bf16_f32 v{TP+2*nn+1}, v{X[4*nn+2]}, v{X[4*nn+3]}"))
        for nn,k in enumerate(ks):
            F.append(It(f"v_and_b32 v{TP+2*nn}, v{TP+2*nn}, v{vHM+k}"))
            F.append(It(f"v_and_b32 v{TP+2*nn+1}, v{TP+2*nn+1}, v{vHM+k}"))
        for nn,k in enumerate(ks):
            tag=("Tw",1,i) if k==2 else None
            F.append(It(f"ds_write_b64 v{vHW+k}, {pk(TP+2*nn)} offset:{i*PP}", tag=tag))
    return F

def ring_load(cc, f):
    so = f"s{S4K-1+f//4}" if f//4 else "0"
    return It(f"buffer_load_dwordx4 {a(RING+4*f,4)}, v{vWV}, {s(SWF,4)}, {so} offen offset:{1024*(f%4)} sc1", tag=("W",cc,f))

def conv_loop(P, conv, fills, pre=None):
    ACC = ACC1 if conv==0 else ACC2
    seq=[]
    for c in range(4):
        if c<3:
            for p in range(2):
                for dx in range(3):
                    for dy in range(3):
                        for r in range(4):
                            seq.append(dict(c=c,f=(p*3+dx)*3+dy,key=(c,p,dx,r+dy,-1),r=r))
        else:
            for r in range(4):
                for p in range(2):
                    for dx in range(3):
                        for dy in range(3):
                            seq.append(dict(c=c,f=(p*3+dx)*3+dy,key=(c,p,dx,r+dy,r),r=r))
    N=len(seq)
    loads=[]; kidx={}
    for n,m in enumerate(seq):
        k=m["key"]
        if k not in kidx:
            kidx[k]=len(loads); loads.append(dict(key=k,first=n,last=n))
        loads[kidx[k]]["last"]=n
    BAR=63
    gaps=[[] for _ in range(N)]; preamble=[]
    prev=-1
    for n,L in enumerate(loads):
        c,p,dx,row,_=L["key"]; slot=n%12; L["slot"]=slot
        pos=L["first"]-8
        if n>=12: pos=max(pos, loads[n-12]["last"])
        if c>0: pos=max(pos, 72*(c-1)+BAR+1)
        if pos>=0: pos=max(pos, prev+1)
        assert pos<L["first"]-2 or pos<0 or L["first"]<3, (n,pos,L)
        off=(8*p+c)*PP+row*ROWP+dx*16
        it=It(f"ds_read_b128 {a(ACT+4*slot,4)}, v{vRD} offset:{off}", tag=("act",conv,n))
        if pos<0: preamble.append(it)
        else: gaps[pos].append(it); prev=pos
    last={}
    for n,m in enumerate(seq): last[(m["c"],m["f"])]=n
    for (c,f),n in last.items():
        cc=4*conv+c
        if cc+1<8: gaps[n].append(ring_load(cc+1,f))
    for c in range(4):
        if 4*conv+c+1<8:
            gaps[72*c].append(It(f"v_add_u32 v{vWV}, {18*1024}, v{vWV}"))
    for c in range(4):
        for (items,st,en) in fills.get(c,[]):
            sp=spread(72,items,st,en)
            for g in range(72): gaps[72*c+g]+=sp[g]
        if c<3:
            gaps[72*c+BAR].append(It("s_barrier", needs=[("Tw",conv,c+1)]))
    for it in preamble: P.add(it)
    seenW=set(); started=set()
    for n,m in enumerate(seq):
        cc=4*conv+m["c"]; needs=[("act",conv,kidx[m["key"]])]
        if (cc,m["f"]) not in seenW:
            seenW.add((cc,m["f"])); needs.append(("W",cc,m["f"]))
        L=loads[kidx[m["key"]]]
        acc=v(ACC+16*m["r"],16); w=a(RING+4*m["f"],4); act=a(ACT+4*L["slot"],4)
        cin=acc
        if conv==0 and m["r"] not in started:
            started.add(m["r"]); cin="0"
        if conv==0: P.I(f"v_mfma_f32_32x32x16_bf16 {acc}, {w}, {act}, {cin}", needs=needs)
        else:       P.I(f"v_mfma_f32_32x32x16_bf16 {acc}, {act}, {w}, {cin}", needs=needs)
        for it in gaps[n]: P.add(it)

def h_row_store(r):
    F=[]
    va = vHS if r in (0,3) else vHSm
    for m in range(2):
        so={(0,0):"0",(1,0):f"s{S4K}",(0,1):f"s{S512K}",(1,1):f"s{S516K}"}[(r>>1,m)]
        F.append(It(f"buffer_store_dwordx4 {v(32+4*m,4)}, v{va}, {s(SH,4)}, {so} offen offset:{2048*(r&1)} sc1"))
    return F
def pack_swap(R):
    F=[]
    for i in range(4):
        F.append(It(f"v_cvt_pk_bf16_f32 v{32+2*i}, v{R+4*i}, v{R+4*i+1}"))
        F.append(It(f"v_cvt_pk_bf16_f32 v{32+2*i+1}, v{R+4*i+2}, v{R+4*i+3}"))
    for m in range(2):
        F.append(It(f"v_permlane32_swap_b32 v{32+4*m}, v{32+4*m+2}"))
        F.append(It(f"v_permlane32_swap_b32 v{32+4*m+1}, v{32+4*m+3}"))
    return F
def conv1_row_epi(r, packed):
    R=ACC1+16*r; F=[]
    if packed:
        for k in range(0,16,2): F.append(It(f"v_pk_add_f32 {pk(R+k)}, {pk(R+k)}, {pk(EP+k)}"))
    else:
        for k in range(16): F.append(It(f"v_add_f32 v{R+k}, v{R+k}, v{EP+k}", needs=[("ep",k//4)]))
    F+=pack_swap(R)+h_row_store(r)
    if packed:
        for k in range(0,16,2):
            F.append(It(f"v_pk_add_f32 v[40:41], v[40:41], {pk(R+k)}"))
            F.append(It(f"v_pk_fma_f32 v[42:43], {pk(R+k)}, {pk(R+k)}, v[42:43]"))
    else:
        for k in range(16):
            F.append(It(f"v_add_f32 v{40+(k&1)}, v{40+(k&1)}, v{R+k}"))
            F.append(It(f"v_fmac_f32 v{42+(k&1)}, v{R+k}, v{R+k}"))
    return F
def conv2_row_epi(r, packed):
    R=ACC2+16*r; F=[]
    if packed:
        for k in range(0,16,2): F.append(It(f"v_pk_mul_f32 {pk(R+k)}, {pk(R+k)}, {s(SNLN,2)}"))
    else:
        for k in range(16): F.append(It(f"v_mul_f32 v{R+k}, s{SNLN}, v{R+k}"))
    F+=pack_swap(R)
    for m in range(2):
        F.append(It(f"buffer_store_dwordx4 {v(32+4*m,4)}, v{vXO}, {s(SO,4)}, 0 offen offset:{256*r+32*m}"))
    return F

def gen():
    P=Prog()
    P(f".globl {NAME}"); P(".p2align 8"); P(f".type {NAME},@function"); P(f"{NAME}:")
    P("s_cmp_ge_u32 s2, 256")
    P("s_cbranch_scc1 L_end")
    P("s_load_dwordx16 s[4:19], s[0:1], 0")
    P("s_load_dwordx8 s[20:27], s[0:1], 64")
    P("s_getpc_b64 s[98:99]")
    P("L_pc:")
    P("v_lshlrev_b32 v2, 7, v0")
    P("v_min_u32 v2, L_codeend-L_pc-4, v2")
    P("global_load_dword v114, v2, s[98:99]")
    if PROF:
        P(f"v_mov_b32 v{vSR}, 0"); P(f"v_mov_b32 v{vSC}, 0")
    m9,s9=magic(9,63); m5,s5=magic(5,63); m3,s3_=magic(3,15)
    P(f"""
    v_lshrrev_b32 v2, 6, v0
    v_and_b32 v{vL}, 63, v0
    v_readfirstlane_b32 s{sW}, v2
    s_and_b32 s3, s2, 7
    s_lshr_b32 s56, s2, 3
    s_lshr_b32 s{sBt}, s3, 2
    s_and_b32 s3, s3, 3
    s_lshl_b32 s{sRow0}, s3, 5
    s_and_b32 s57, s56, 0x1c
    s_add_u32 s{sRow0}, s{sRow0}, s57
    s_and_b32 s57, s56, 3
    s_add_u32 s{sT}, s{sRow0}, s57
    s_lshl_b32 s{sCol0}, s57, 5
    v_min_u32 v60, 35, v{vL}
    v_mul_u32_u24 v61, {m9}, v60
    v_lshrrev_b32 v61, {s9}, v61            ; o
    v_mul_u32_u24 v62, 9, v61
    v_sub_u32 v62, v60, v62
    s_lshr_b32 s56, s{sT}, 4                ; oq
    s_and_b32 s57, s{sT}, 15                ; co
    s_lshl_b32 s58, s{sW}, 5
    s_lshl_b32 s59, s56, 2
    s_add_u32 s58, s58, s59
    s_mul_i32 s58, s58, 2304
    s_mul_i32 s59, s57, 144
    s_add_u32 s58, s58, s59
    v_mul_u32_u24 v63, 2304, v61
    v_lshl_add_u32 v63, v62, 4, v63
    v_add_u32 v63, s58, v63
    """)
    P(f"""
    v_min_u32 v48, 59, v{vL}
    v_mul_u32_u24 v49, {m5}, v48
    v_lshrrev_b32 v49, {s5}, v49            ; qr
    v_mul_u32_u24 v50, 5, v49
    v_sub_u32 v50, v48, v50                 ; seg
    v_and_b32 v51, 1, v49                   ; q
    v_lshrrev_b32 v52, 1, v49               ; rr
    s_sub_u32 s56, s{sRow0}, 1
    v_add_u32 v53, s56, v52                 ; y
    v_max_i32 v54, 0, v53
    v_min_u32 v54, 127, v54                 ; yc
    s_lshl_b32 s56, s{sBt}, 22
    s_lshl_b32 s57, s{sW}, 20
    s_add_u32 s56, s56, s57
    s_lshl_b32 s57, s{sCol0}, 1
    s_add_u32 s56, s56, s57
    s_sub_u32 s56, s56, 4
    v_lshlrev_b32 v55, 17, v51
    v_lshl_add_u32 v55, v54, 8, v55
    v_lshl_add_u32 v55, v50, 4, v55
    v_add_u32 v55, s56, v55                 ; V0
    v_add_u32 v56, {32768}, v55             ; V1
    s_mov_b32 s{SX+2}, {NX}
    s_mov_b32 s{SX+3}, 0x20000
    s_mov_b32 s{SWS+2}, {WS_LOW}
    s_mov_b32 s{SWS+3}, 0x20000
    s_mov_b32 s{S32K}, 32768
    s_mov_b32 s{S64K}, 65536
    s_mov_b32 s{S96K}, 98304
    """)
    stamp(P)
    P("s_waitcnt lgkmcnt(0)")
    P.I("global_load_dwordx4 v[64:67], v63, s[12:13]", tag="Wraw0")
    P.I("global_load_dwordx4 v[68:71], v63, s[20:21]", tag="Wraw1")
    P(f"""
    s_mov_b32 s{SX}, s4
    s_mov_b32 s{SX+1}, s5
    s_mov_b32 s{SWS}, s26
    s_mov_b32 s{SWS+1}, s27
    """)
    P.I(f"buffer_load_dword v{vTag}, off, {s(SWS,4)}, 0 sc1", tag="E")
    so=["0",f"s{S32K}",f"s{S64K}",f"s{S96K}"]
    P.I(f"buffer_load_dword v{rawreg(0,0,0)}, v55, {s(SX,4)}, 0 offen")
    P.I(f"buffer_load_dwordx3 {v(rawreg(0,0,1),3)}, v55, {s(SX,4)}, 0 offen offset:4", tag=("x",0,0))
    for m in range(1,4):
        P.I(f"buffer_load_dwordx4 {v(rawreg(0,m,0),4)}, v56, {s(SX,4)}, {so[m-1]} offen", tag=("x",0,m))
    for i in range(1,4):
        P(f"v_add_u32 v56, {(7 if i==1 else 8)*32768}, v56")
        for m in range(4):
            P.I(f"buffer_load_dwordx4 {v(rawreg(i,m,0),4)}, v56, {s(SX,4)}, {so[m]} offen", tag=("x",i,m))
    P(f"""
    s_lshl_b32 s56, s{sW}, 6
    v_lshlrev_b32 v57, 3, v51
    v_add_u32 v57, s56, v57
    """)
    for i in range(4): P.I(f"global_load_dwordx2 {v(88+2*i,2)}, v57, s[8:9] offset:{16*i}", tag=("g1",i))
    for i in range(4): P.I(f"global_load_dwordx2 {v(96+2*i,2)}, v57, s[10:11] offset:{16*i}", tag=("be1",i))
    stamp(P)
    P(f"s_mul_i32 s56, s{sBt}, {WF_B}")
    P(f"s_add_u32 s56, s56, {WS_WF}")
    P(f"s_add_u32 s{SWF}, s26, s56"); P(f"s_addc_u32 s{SWF+1}, s27, 0")
    P(f"s_mov_b32 s{SWF+2}, {WF_B}"); P(f"s_mov_b32 s{SWF+3}, 0x20000")
    srd(P,SH,26,NX,WS_H)
    srd(P,SO,22,NX)
    P(f"s_mul_i32 s56, s{sBt}, 2304")
    P(f"s_add_u32 s{SA}, s6, s56"); P(f"s_addc_u32 s{SA+1}, s7, 0")
    P(f"s_mov_b32 s{SA+2}, 2304"); P(f"s_mov_b32 s{SA+3}, 0x20000")
    srd(P,SB,14,294912)
    P(f"s_mov_b32 s{S_G2}, {G2_OFF}")
    for k in range(1,5): P(f"s_mov_b32 s{S4K-1+k}, {4096*k}")
    for r,val in ((S128K,131072),(S192K,196608),(S256K,262144),(S512K,524288),(S768K,786432),(S516K,528384),(SW2,73728)):
        P(f"s_mov_b32 s{r}, {val}")
    P(f"s_mov_b32 s{SONE}, 1.0"); P(f"s_mov_b32 s{SONE+1}, 1.0")
    P(f"s_mov_b32 s{SMASK}, 0xffff0000")
    P(f"s_mov_b32 s{SNL}, {fhex(-LOG2E)}"); P(f"s_mov_b32 s{SNL+1}, {fhex(-LOG2E)}")
    P(f"s_mov_b32 s{SNLN}, {fhex(-LN2)}"); P(f"s_mov_b32 s{SNLN+1}, {fhex(-LN2)}")
    P(f"""
    s_mul_i32 s56, s{sW}, 1280
    s_add_u32 s56, s56, {TILE2}
    v_lshl_add_u32 v58, v60, 4, s56
    v_mul_u32_u24 v59, 144, v61
    v_lshl_add_u32 v59, v62, 1, v59
    v_add_u32 v59, s56, v59
    v_mul_u32_u24 v122, {m3}, v62
    v_lshrrev_b32 v122, {s3_}, v122         ; dy
    v_mul_u32_u24 v123, 3, v122
    v_sub_u32 v123, v62, v123               ; dx
    v_mul_u32_u24 v123, 3, v123
    v_add_u32 v123, v123, v122              ; dx*3+dy
    v_lshlrev_b32 v123, 10, v123
    v_lshl_add_u32 v123, v61, 4, v123
    s_and_b32 s57, s{sT}, 15                ; co
    s_and_b32 s58, s57, 3
    s_lshl_b32 s58, s58, 1
    s_lshr_b32 s59, s57, 3
    s_add_u32 s58, s58, s59
    s_mul_i32 s58, s58, {9*1024}
    s_lshr_b32 s59, s57, 2
    s_and_b32 s59, s59, 1
    s_lshl_b32 s59, s59, 9                  ; 32*16
    s_add_u32 s58, s58, s59
    s_lshr_b32 s59, s{sT}, 4
    s_lshl_b32 s59, s59, 6                  ; 4*16
    s_add_u32 s58, s58, s59
    s_mul_i32 s59, s{sW}, 147456
    s_add_u32 s58, s58, s59
    v_add_u32 v123, s58, v123
    v_mov_b32 v124, {OOB}
    v_cmp_gt_u32 vcc, 36, v{vL}
    v_cndmask_b32 v123, v124, v123, vcc
    v_lshlrev_b32 v{vWV}, 4, v{vL}
    v_add_u32 v{vWV}, s59, v{vWV}
    """)
    P.I("ds_write_b128 v58, v[64:67]", needs=["Wraw0"])
    P.I("ds_write_b128 v58, v[68:71] offset:640", needs=["Wraw1"])
    for c in range(2):
        for j in range(8):
            P.I(f"ds_read_u16 v{72+8*c+j}, v59 offset:{640*c+18*j}", tag=("wg",c,j))
    for c in range(2):
        for k in range(4):
            P.I(f"v_lshl_or_b32 v{64+4*c+k}, v{72+8*c+2*k+1}, 16, v{72+8*c+2*k}", needs=[("wg",c,2*k+1)])
        P.I(f"buffer_store_dwordx4 {v(64+4*c,4)}, v123, {s(SWF,4)}, {'0' if c==0 else 's%d'%SW2} offen sc1", tag=("Wst",c))
    P(f"""
    v_lshlrev_b32 v124, 1, v0
    v_lshlrev_b32 v125, 8, v0
    s_lshl_b32 s56, s{sT}, 1
    v_add_u32 v125, s56, v125
    """)
    for k in range(5): P.I(f"buffer_load_short_d16_hi v{104+k}, v124, {s(SA,4)}, 0 offen offset:{512*k}", tag=("te",k))
    eso=["0",f"s{S64K}",f"s{S128K}",f"s{S192K}",f"s{S256K}"]
    for k in range(5): P.I(f"buffer_load_short_d16_hi v{109+k}, v125, {s(SB,4)}, {eso[k]} offen", tag=("we",k))
    P(f"""
    v_and_b32 v60, 31, v{vL}                ; p
    v_lshrrev_b32 v61, 5, v{vL}             ; h
    v_mul_u32_u24 v{vRD}, {4*PP}, v61
    v_lshl_add_u32 v{vRD}, v60, 4, v{vRD}
    v_add_u32 v{vRD}, 16, v{vRD}
    s_mul_i32 s56, s{sW}, {4*PP}
    v_mul_u32_u24 v{vT1W}, {ROWP}, v52
    v_lshl_add_u32 v{vT1W}, v50, 7, v{vT1W}
    v_lshl_add_u32 v{vT1W}, v51, 3, v{vT1W}
    v_add_u32 v{vT1W}, s56, v{vT1W}
    s_add_u32 s57, s56, {TILE2}
    v_lshlrev_b32 v62, 3, v61               ; 8h
    v_lshl_add_u32 v{vT2W}, v60, 4, v62
    s_add_u32 s58, s57, {ROWP+32}
    v_add_u32 v{vT2W}, s58, v{vT2W}
    s_cmp_eq_u32 s{sCol0}, 0
    s_cselect_b32 s58, 0, 7
    s_cmp_eq_u32 s{sCol0}, 96
    s_cselect_b32 s59, 4, 7
    v_mov_b32 v63, 0
    v_cmp_ne_u32 vcc, s58, v50
    v_cndmask_b32 v{vMA}, v63, -1, vcc
    v_cmp_ne_u32 vcc, s59, v50
    v_cndmask_b32 v{vMB}, v63, -1, vcc
    s_lshl_b32 s58, s{sBt}, 2
    s_add_u32 s58, s58, s{sW}
    s_lshl_b32 s58, s58, 11
    s_add_u32 s58, s58, {WS_G1}
    v_lshl_add_u32 v{vGpoll}, v{vL}, 5, s58
    s_lshl_b32 s59, s{sT}, 4
    s_add_u32 s58, s58, s59
    v_mov_b32 v124, {OOB}
    v_mov_b32 v125, s58
    v_cmp_eq_u32 vcc, 0, v{vL}
    v_cndmask_b32 v{vGpub}, v124, v125, vcc
    s_lshl_b32 s58, s{sBt}, 7
    s_add_u32 s59, s58, s{sT}
    s_lshl_b32 s59, s59, 3
    s_add_u32 s59, s59, {WS_EMB}
    v_mov_b32 v125, s59
    v_cmp_eq_u32 vcc, 0, v0
    v_cndmask_b32 v{vEpub}, v124, v125, vcc
    s_lshl_b32 s59, s{sW}, 5
    s_add_u32 s58, s58, s59                 ; b*128+32w
    s_lshl_b32 s59, s58, 3
    s_add_u32 s59, s59, {WS_EMB}
    v_lshl_add_u32 v{vEpoll}, v60, 3, s59
    s_lshl_b32 s58, s58, 15
    s_lshl_b32 s59, s{sRow0}, 8
    s_add_u32 s58, s58, s59
    s_lshl_b32 s59, s{sCol0}, 1
    s_add_u32 s58, s58, s59
    v_lshlrev_b32 v{vXO}, 15, v60
    v_lshl_add_u32 v{vXO}, v61, 4, v{vXO}
    v_add_u32 v{vXO}, s58, v{vXO}
    s_lshl_b32 s58, s{sBt}, 4
    s_lshl_b32 s59, s{sW}, 2
    s_add_u32 s58, s58, s59
    s_lshl_b32 s58, s58, 18                 ; (b*16+4w)*16384*16
    s_lshl_b32 s59, s{sRow0}, 7
    s_add_u32 s59, s59, s{sCol0}
    s_lshl_b32 s59, s59, 4
    s_add_u32 s59, s58, s59
    v_lshlrev_b32 v{vHS}, 18, v61
    v_lshl_add_u32 v{vHS}, v60, 4, v{vHS}
    v_add_u32 v{vHS}, s59, v{vHS}
    v_add_u32 v63, 1, v60
    v_and_b32 v63, 30, v63
    v_cmp_eq_u32 vcc, 0, v63                ; p==31 -> 32&30=0 ; p==0 -> 1&30=0
    v_cndmask_b32 v{vHSm}, v124, v{vHS}, vcc
    """)
    def halo(k, rr, cc, extra_valid=None):
        P(f"""
        s_sub_u32 s59, s{sRow0}, 1
        v_add_u32 v122, s59, v{rr}
        s_sub_u32 s59, s{sCol0}, 1
        v_add_u32 v123, s59, v{cc}
        v_cmp_gt_u32 s[90:91], s{S128X}, v122
        v_cmp_gt_u32 vcc, s{S128X}, v123
        s_and_b64 vcc, vcc, s[90:91]
        """)
        if extra_valid: P(f"s_and_b64 vcc, vcc, {extra_valid}")
        P(f"""
        v_mov_b32 v126, 0
        v_cndmask_b32 v{vHM+k}, v126, -1, vcc
        v_mov_b32 v126, s{sRow0}
        v_cndmask_b32 v122, v126, v122, vcc
        v_mov_b32 v126, s{sCol0}
        v_cndmask_b32 v123, v126, v123, vcc
        v_lshl_add_u32 v122, v122, 7, v123
        v_lshl_add_u32 v122, v122, 4, v62
        v_add_u32 v{vHG+k}, s58, v122
        v_mul_u32_u24 v122, {ROWP}, v{rr}
        v_lshl_add_u32 v122, v{cc}, 4, v122
        v_add_u32 v122, v122, v62
        s_add_u32 s59, s57, 16
        v_add_u32 v{vHW+k}, s59, v122
        """)
    S128X=81
    P(f"s_mov_b32 s{S128X}, 128")
    P("v_mov_b32 v120, 0"); halo(0,120,60)
    P("v_mov_b32 v120, 5"); halo(1,120,60)
    P(f"""
    v_add_u32 v120, -7, v60
    v_add_u32 v121, -3, v60
    v_cmp_gt_u32 vcc, 8, v60
    v_cndmask_b32 v120, v120, v121, vcc     ; p<8 ? p-3 : p-7
    v_mov_b32 v121, 33
    v_cndmask_b32 v121, v121, 0, vcc        ; p<8 ? 0 : 33
    v_add_u32 v118, 30, v60
    v_cmp_gt_u32 vcc, 4, v60
    v_cndmask_b32 v120, v120, 5, vcc
    v_cndmask_b32 v121, v121, v118, vcc
    v_add_u32 v118, 32, v60
    v_cmp_gt_u32 vcc, 2, v60
    v_cndmask_b32 v120, v120, 0, vcc
    v_cndmask_b32 v121, v121, v118, vcc
    v_cmp_gt_u32 s[96:97], 12, v60
    v_cndmask_b32 v120, 0, v120, s[96:97]
    v_mov_b32 v118, 36
    v_cndmask_b32 v121, v118, v121, s[96:97]
    """)
    halo(2,120,121,"s[96:97]")
    P(f"""
    v_cmp_gt_u32 vcc, s{S128X}, v53
    v_cndmask_b32 v118, 0, 1.0, vcc
    v_add_u32 v119, -1, v52
    v_cmp_gt_u32 s[90:91], 4, v119
    v_cmp_gt_u32 vcc, 60, v{vL}
    s_and_b64 s[90:91], s[90:91], vcc
    v_cmp_ne_u32 vcc, 4, v50
    s_and_b64 s[96:97], s[90:91], vcc       ; B: seg != 4
    v_cmp_ne_u32 vcc, 0, v50
    s_and_b64 s[90:91], s[90:91], vcc       ; A: seg != 0
    v_mov_b32 v119, 0x3f803f80
    """)
    for r in range(122,128): P(f"v_mov_b32 v{r}, 0")
    first=True
    for i in range(4):
        for m in range(4):
            for d in range(4):
                sr,qr={0:(122,123),1:(124,125),2:(126,127),3:(124,125)}[d]
                x=rawreg(i,m,d)
                P.I(f"v_dot2_f32_bf16 v{sr}, v{x}, v119, v{sr}", needs=[("x",i,m)])
                P.I(f"v_dot2_f32_bf16 v{qr}, v{x}, v{x}, v{qr}")
    stamp(P)
    P(f"""
    v_add_f32 v124, v124, v126
    v_add_f32 v125, v125, v127
    v_cndmask_b32 v122, 0, v122, s[90:91]
    v_cndmask_b32 v123, 0, v123, s[90:91]
    v_cndmask_b32 v124, 0, v124, s[96:97]
    v_cndmask_b32 v125, 0, v125, s[96:97]
    v_add_f32 v{vPub}, v122, v124
    v_add_f32 v{vPub+2}, v123, v125
    """)
    P(f"s_mov_b32 s56, 0x9E3779B1")
    P.I(f"v_mul_lo_u32 v{vTag}, v{vTag}, s56", needs=["E"])
    P(f"v_add_u32 v{vTag}, 0x7F4A7C15, v{vTag}")
    allreduce(P,[vPub,vPub+2],[122,123])
    P(f"v_mov_b32 v{vPub+1}, v{vTag}"); P(f"v_mov_b32 v{vPub+3}, v{vTag}")
    P.I(f"buffer_store_dwordx4 {v(vPub,4)}, v{vGpub}, {s(SWS,4)}, 0 offen sc1", needs=[("Wst",0),("Wst",1)])
    PD=48
    poll_issue(P,PD,"0")
    stamp(P)
    P.I(f"v_mul_f32 v117, s{SNL}, v118")
    GH=72
    for i in range(4):
        for d in range(2):
            gr=88+2*i+d; br=96+2*i+d; m=2*d
            P.I(f"v_lshlrev_b32 v{GH+4*i+m}, 16, v{gr}", needs=[("g1",i)])
            P.I(f"v_and_b32 v{GH+4*i+m+1}, s{SMASK}, v{gr}")
            P.I(f"v_lshlrev_b32 v{B1+4*i+m}, 16, v{br}", needs=[("be1",i)])
            P.I(f"v_and_b32 v{B1+4*i+m+1}, s{SMASK}, v{br}")
    for k in range(16): P(f"v_mul_f32 v{B1+k}, v{B1+k}, v117")
    for i in range(4):
        for d in range(2):
            gr=88+2*i+d
            P(f"v_and_b32 v{120+2*d}, 0xffff, v{gr}")
            P(f"v_lshrrev_b32 v{121+2*d}, 16, v{gr}")
        for m in range(4):
            b=U+32*i+8*m; glo=120+m; ghi=GH+4*i+m
            for d in range(4):
                x=rawreg(i,m,d)
                lo=f"v_dot2_f32_bf16 v{b+2*d}, v{x}, v{glo}, 0"
                hi=f"v_dot2_f32_bf16 v{b+2*d+1}, v{x}, v{ghi}, 0"
                if b+2*d==x: P(hi); P(lo)
                else: P(lo); P(hi)
    for k in range(5): P.I(f"v_mul_f32 v{120+k}, s{SNL}, v{104+k}", needs=[("te",k)])
    for k in range(5): P(f"v_exp_f32 v{120+k}, v{120+k}")
    for k in range(5): P(f"v_add_f32 v{120+k}, 1.0, v{120+k}")
    for k in range(5): P(f"v_rcp_f32 v{120+k}, v{120+k}")
    for k in range(5): P(f"v_mul_f32 v{120+k}, v{120+k}, v{104+k}")
    P.I("v_mul_f32 v114, v120, v109", needs=[("we",0)])
    for k in range(1,5): P.I(f"v_fmac_f32 v114, v{120+k}, v{109+k}", needs=[("we",k)])
    allreduce(P,[114],[115])
    P(f"s_lshl_b32 s56, s{sW}, 2")
    P(f"s_add_u32 s56, s56, {EMBP}")
    P("v_mov_b32 v115, s56")
    P("ds_write_b32 v115, v114")
    stamp(P)
    poll(P,"p1",PD,"0")
    stamp(P)
    P(f"v_add_f32 v{PD}, v{PD}, v{PD+4}")
    P(f"v_add_f32 v{PD+2}, v{PD+2}, v{PD+6}")
    allreduce(P,[PD,PD+2],[60,61])
    P(f"""
    v_mul_f32 v60, {fhex(INV_N)}, v{PD}          ; mean
    v_mul_f32 v61, {fhex(INV_N)}, v{PD+2}
    v_fma_f32 v61, -v60, v60, v61
    v_max_f32 v61, 0, v61
    v_add_f32 v61, {fhex(EPS)}, v61
    v_rsq_f32 v61, v61
    v_mul_f32 v{vK1}, v61, v117                  ; K1 = -log2e*flag*rstd
    v_mul_f32 v60, -v60, v{vK1}                  ; -K1*mean
    """.replace("v_mul_f32 v60, -v60, v6","v_mul_f32_e64 v60, -v60, v6"))
    for k in range(16): P(f"v_fma_f32 v{B1+k}, v60, v{GH+k}, v{B1+k}")
    F=t1_fill(0,packed=True)
    rl=[ring_load(0,f) for f in range(18)]
    step=len(F)//19
    n=0
    for k,it in enumerate(F):
        P.add(it)
        if (k+1)%step==0 and n<18: P.add(rl[n]); n+=1
    while n<18: P.add(rl[n]); n+=1
    P.I("s_barrier", needs=[("Tw",0,0)])
    P("s_waitcnt lgkmcnt(0)")
    stamp(P)
    embpub=[It(f"v_mov_b32 v60, {EMBP}"),
            It("ds_read_b128 v[44:47]".replace("44:47","60:63")+", v60", tag="embp"),
            It("v_add_f32 v60, v60, v61", needs=["embp"]),
            It("v_add_f32 v62, v62, v63"),
            It("v_add_f32 v60, v60, v62"),
            It(f"v_mul_f32 v60, s{SNL}, v60"),
            It(f"v_mov_b32 v61, v{vTag}"),
            It(f"buffer_store_dwordx2 v[60:61], v{vEpub}, {s(SWS,4)}, 0 offen sc1")]
    embld=[It(f"buffer_load_dwordx2 {pk(EG)}, v{vEpoll}, {s(SWS,4)}, 0 offen sc1", tag="eg")]
    embchk=[It(f"v_cmp_ne_u32 vcc, v{vTag}, v{EG+1}", needs=["eg"]),
            It("s_cbranch_vccz L_e_ok")]
    slow=[f"s_mov_b32 s{sCnt}, 0x4000","L_e_re:",
          f"buffer_load_dwordx2 {pk(EG)}, v{vEpoll}, {s(SWS,4)}, 0 offen sc1","s_waitcnt vmcnt(0)",
          f"v_cmp_ne_u32 vcc, v{vTag}, v{EG+1}","s_cbranch_vccz L_e_ok",
          f"s_sub_u32 s{sCnt}, s{sCnt}, 1","s_cbranch_scc0 L_e_re"]
    embchk+=[It(t,raw=True,cost=0) for t in slow]+[It("L_e_ok:",cost=0)]
    embchk+=[It(f"v_and_b32 v60, 31, v{vL}"),
             It(f"v_lshlrev_b32 v60, 2, v60"),
             It(f"s_lshl_b32 s56, s{sW}, 7"),
             It(f"s_add_u32 s56, s56, {ES}"),
             It(f"v_add_u32 v60, s56, v60"),
             It(f"ds_write_b32 v60, v{EG}"),
             It(f"v_lshrrev_b32 v61, 5, v{vL}"),
             It(f"v_lshl_add_u32 v61, v61, 4, s56")]
    embchk+=[It(f"ds_read_b128 {v(EP+4*i,4)}, v61 offset:{32*i}", tag=("ep",i)) for i in range(4)]
    c3pre=[It(f"v_mov_b32 v{r}, 0") for r in (40,41,42,43)]
    c3pre+=[It(f"v_lshrrev_b32 v44, 5, v{vL}"), It(f"s_lshl_b32 s56, s{sW}, 6"), It(f"v_lshl_add_u32 v44, v44, 3, s56")]
    for r in range(4):
        for m in range(2):
            c3pre.append(It(f"buffer_load_dwordx4 {v(XR+8*r+4*m,4)}, v{vXO}, {s(SX,4)}, 0 offen offset:{256*r+32*m}", tag=("xr",r,m)))
    for i in range(4): c3pre.append(It(f"global_load_dwordx2 {pk(G2R+2*i)}, v44, s[16:17] offset:{16*i}", tag=("g2",i)))
    for i in range(4): c3pre.append(It(f"global_load_dwordx2 {pk(G2R+8+2*i)}, v44, s[18:19] offset:{16*i}", tag=("be2",i)))
    fills={0:[(t1_fill(1),0,63),(embpub,4,40)],
           1:[(t1_fill(2),0,63),(embld,10,12)],
           2:[(t1_fill(3),0,63),(embchk,20,21)],
           3:[(c3pre,0,18),(conv1_row_epi(0,False),20,36),(conv1_row_epi(1,False),38,54),(conv1_row_epi(2,False),56,72)]}
    conv_loop(P,0,fills)
    stamp(P)
    for it in conv1_row_epi(3,True): P.add(it)
    P(f"v_add_f32 v{vPub}, v40, v41")
    P(f"v_add_f32 v{vPub+2}, v42, v43")
    allreduce(P,[vPub,vPub+2],[60,61])
    P("s_waitcnt vmcnt(0)")
    P(f"buffer_store_dwordx4 {v(vPub,4)}, v{vGpub}, {s(SWS,4)}, s{S_G2} offen sc1")
    poll_issue(P,PD,f"s{S_G2}")
    stamp(P)
    for r in range(4):
        for m in range(2):
            b=XR+8*r+4*m
            P(f"v_permlane32_swap_b32 v{b}, v{b+2}")
            P(f"v_permlane32_swap_b32 v{b+1}, v{b+3}")
    for r in range(4):
        for i in range(4):
            for k in range(2):
                src=XR+8*r+2*i+k; d=ACC2+16*r+4*i+2*k
                P(f"v_lshlrev_b32 v{d}, 16, v{src}")
                P(f"v_and_b32 v{d+1}, s{SMASK}, v{src}")
    for k in range(0,64,2): P(f"v_pk_mul_f32 {pk(ACC2+k)}, {pk(ACC2+k)}, {s(SNL,2)}")
    for i in range(4):
        for d in range(2):
            P(f"v_lshlrev_b32 v{A2+4*i+2*d}, 16, v{G2R+2*i+d}")
            P(f"v_and_b32 v{A2+4*i+2*d+1}, s{SMASK}, v{G2R+2*i+d}")
    for i in range(4):
        for d in range(2):
            P(f"v_lshlrev_b32 v{B2+4*i+2*d}, 16, v{G2R+8+2*i+d}")
            P(f"v_and_b32 v{B2+4*i+2*d+1}, s{SMASK}, v{G2R+8+2*i+d}")
    for k in range(0,16,2): P(f"v_pk_mul_f32 {pk(B2+k)}, {pk(B2+k)}, {s(SNL,2)}")
    P(f"v_add_u32 v{vRD}, {TILE2}, v{vRD}")
    stamp(P)
    poll(P,"p2",PD,f"s{S_G2}")
    hso=["0",f"s{S256K}",f"s{S512K}",f"s{S768K}"]
    for i in range(4):
        for k in range(3):
            P.I(f"buffer_load_dwordx2 {pk(HR+6*i+2*k)}, v{vHG+k}, {s(SH,4)}, {hso[i]} offen sc1", tag=("halo",i,k))
    stamp(P)
    P(f"v_add_f32 v{PD}, v{PD}, v{PD+4}")
    P(f"v_add_f32 v{PD+2}, v{PD+2}, v{PD+6}")
    allreduce(P,[PD,PD+2],[60,61])
    P(f"""
    v_mul_f32 v60, {fhex(INV_N)}, v{PD}          ; m'
    v_mul_f32 v61, {fhex(INV_N)}, v{PD+2}
    v_fma_f32 v61, -v60, v60, v61
    v_max_f32 v61, 0, v61
    v_mul_f32 v61, {fhex(LN2*LN2)}, v61
    v_add_f32 v61, {fhex(EPS)}, v61
    v_rsq_f32 v61, v61
    """)
    for k in range(16): P(f"v_mul_f32 v{A2+k}, v{A2+k}, v61")
    for k in range(16): P(f"v_fma_f32 v{B2+k}, -v60, v{A2+k}, v{B2+k}")
    for it in t2_interior(0,True)+t2_halo(0,True): P.add(it)
    P.I("s_barrier", needs=[("Tw",1,0)])
    P("s_waitcnt lgkmcnt(0)")
    stamp(P)
    fills={0:[(t2_interior(1)+t2_halo(1),0,63)],
           1:[(t2_interior(2)+t2_halo(2),0,63)],
           2:[(t2_interior(3)+t2_halo(3),0,63)],
           3:[(conv2_row_epi(0,False),20,36),(conv2_row_epi(1,False),38,54),(conv2_row_epi(2,False),56,72)]}
    conv_loop(P,1,fills)
    stamp(P)
    for it in conv2_row_epi(3,True): P.add(it)
    P(f"s_or_b32 s56, s2, s{sW}")
    P("s_cmp_lg_u32 s56, 0")
    P("s_cbranch_scc1 L_noepoch")
    P.raw(f"""
    s_mov_b32 s{sCnt}, 0x1000
    v_lshlrev_b32 v60, 4, v{vL}
    v_add_u32 v60, {WS_G1+G2_OFF}, v60
    L_ep_re:
    """)
    for k in range(16):
        so = f"s{S4K-1+k//4}" if k//4 else "0"
        P.raw(f"buffer_load_dwordx4 {v(64+4*k,4)}, v60, {s(SWS,4)}, {so} offen offset:{1024*(k%4)} sc1")
    P.raw("s_waitcnt vmcnt(0)")
    P.raw(f"v_xor_b32 v61, v{vTag}, v65")
    for k in range(1,16):
        P.raw(f"v_xor_b32 v62, v{vTag}, v{65+4*k}")
        P.raw("v_or_b32 v61, v61, v62")
    P.raw(f"""
    v_cmp_ne_u32 vcc, 0, v61
    s_cbranch_vccz L_ep_ok
    s_sub_u32 s{sCnt}, s{sCnt}, 1
    s_cbranch_scc0 L_ep_re
    L_ep_ok:
    v_mov_b32 v60, {OOB}
    v_cmp_eq_u32 vcc, 0, v{vL}
    v_cndmask_b32 v60, v60, 0, vcc
    buffer_store_dword v{vTag}, v60, {s(SWS,4)}, 0 offen sc1
    """)
    P("L_noepoch:")
    if PROF:
        stamp(P)
        if DBG:
            P(f"s_or_b32 s56, s2, s{sW}")
            P("s_cmp_lg_u32 s56, 0")
            P("s_cbranch_scc1 L_noprof")
            P("s_mov_b32 s48, s24"); P("s_mov_b32 s49, s25"); P("s_mov_b32 s50, 256"); P("s_mov_b32 s51, 0x20000")
            P(f"v_lshlrev_b32 v60, 2, v{vL}")
            P(f"buffer_store_dword v{vSR}, v60, s[48:51], 0 offen")
            P(f"v_add_u32 v60, 128, v60")
            P(f"v_cmp_gt_u32 vcc, 32, v{vL}")
            P(f"v_mov_b32 v61, {OOB}")
            P(f"v_cndmask_b32 v60, v61, v60, vcc")
            P("L_noprof:")
        else:
            P(f"s_add_u32 s48, s26, {WS_PROF}"); P("s_addc_u32 s49, s27, 0"); P("s_mov_b32 s50, 0x100000"); P("s_mov_b32 s51, 0x20000")
            P(f"s_lshl_b32 s56, s2, 2"); P(f"s_add_u32 s56, s56, s{sW}"); P("s_lshl_b32 s56, s56, 9")
            P(f"v_lshl_add_u32 v60, v{vL}, 2, s56")
            P(f"buffer_store_dword v{vSR}, v60, s[48:51], 0 offen")
            P(f"buffer_store_dword v{vSC}, v60, s[48:51], 0 offen offset:256")
    P("L_end:")
    P("s_endpgm")
    P("L_codeend:")
    return P

KD = f"""
.section .rodata,"a"
.p2align 6
.amdhsa_kernel {NAME}
  .amdhsa_next_free_vgpr {256+120}
  .amdhsa_next_free_sgpr 102
  .amdhsa_accum_offset 256
  .amdhsa_group_segment_fixed_size 0
  .amdhsa_kernarg_size 96
  .amdhsa_user_sgpr_count 2
  .amdhsa_user_sgpr_kernarg_segment_ptr 1
  .amdhsa_system_sgpr_workgroup_id_x 1
  .amdhsa_float_denorm_mode_32 3
.end_amdhsa_kernel
.text
"""
HEADER = open("standalone__adm_resblock__diffusion.s.ref").read().split("; Override launch")[0]

def build(path):
    _st[0]=0
    P=gen()
    L=resolve(P.items)
    L2=fix_hazards(L, report=("--rep" in sys.argv))
    out=HEADER+f"; @launch grid=(256,1,1) block=(256,1,1) lds={LDS_SIZE}\n"
    out+='.amdgcn_target "amdgcn-amd-amdhsa--gfx950"\n.text\n'
    out+="\n".join(L2)+"\n"+KD
    open(path,"w").write(out)
    print("lines",len(L2),"nops added",len(L2)-len(L))

if __name__=="__main__":
    PROF="--prof" in sys.argv or "--dbg" in sys.argv
    DBG="--dbg" in sys.argv
    build(sys.argv[1])
```

```python
import sys, struct
sys.path.insert(0, "tools")
from asmlib import *
from prog import *

NAME = "standalone__adm_resblock__diffusion_kernel"
WS_E   = 0x0
WS_G1  = 0x1000
RECSH  = 7
G2_OFF = 0x8000
WS_EMB = 0x11000
WS_LOW = 0x20000
WS_WF  = 0x20000
WF_B   = 589824
WS_H   = 0x200000
WS_PROF= 0x2000000
NX = 2*128*128*128*2
ROWP = 656
PP = 6*ROWP
TILE1 = 0
TILE2 = 16*PP
SCR = 2*16*PP
EMBP = SCR
ES = SCR+64
PUBL = SCR+576
RED = SCR+640
LDS_SIZE = SCR + 1024
OOB = 0x7ffffff0
def fhex(f): return "0x%08x" % struct.unpack("<I", struct.pack("<f", f))[0]
LOG2E = 1.4426950408889634
LN2 = 0.6931471805599453
INV_N = 1.0/524288.0
EPS = 1e-5

SX,SWS,SWF,SH,SO,SA,SB = 28,32,36,40,44,48,52
sW,sBt,sRow0,sCol0,sT,sCnt = 70,71,72,73,74,75
S_G2=60; S4K=61
S32K,S64K,S96K = 65,66,67
S128K,S192K,S256K,S512K,S768K,S516K,SW2 = 68,69,76,77,78,79,80
SONE=82; SMASK=84; SNL=86; SNLN=88
vL=1; vRD=2; vWV=3; vMA=4; vMB=5; vK1=6; vT1W=7; vTag=8; vGpub=9; vGpoll=10; vEpub=11; vEpoll=12
vXO=13; vHS=14; vHSm=15; vT2W=16; vHG=17; vHW=20; vHM=23; vPub=26
vSR=30; vSC=31
sPLW=85; sRedB=100
B1=32; TE=48; TP=56
ACC1=64; U=128; ACC2=128
HR=192; A2=216; B2=232; XR=192; G2R=240; EP=128; EG=144
RING=0; ACT=72

PROF=False; DBG=False
_st=[0]
def stamp(P):
    if not PROF: return
    k=_st[0]; _st[0]+=1
    P("s_memrealtime s[92:93]")
    P("s_memtime s[94:95]")
    P("s_waitcnt lgkmcnt(0)")
    P(f"v_writelane_b32 v{vSR}, s92, {k}")
    P(f"v_writelane_b32 v{vSC}, s94, {k}")

def pk(r): return f"v[{r}:{r+1}]"
def allreduce(P, regs, tmps):
    for sh in (8,4,2,1):
        for r in regs:
            P(f"v_add_f32_dpp v{r}, v{r}, v{r} row_ror:{sh} row_mask:0xf bank_mask:0xf")
    for which in (16,32):
        for r,t in zip(regs,tmps): P(f"v_mov_b32 v{t}, v{r}")
        for r,t in zip(regs,tmps): P(f"v_permlane{which}_swap_b32 v{r}, v{t}")
        for r,t in zip(regs,tmps): P(f"v_add_f32 v{r}, v{r}, v{t}")

def srd(P, r, lo, size, off=None):
    if off is None:
        P(f"s_mov_b32 s{r}, s{lo}"); P(f"s_mov_b32 s{r+1}, s{lo+1}")
    else:
        P(f"s_add_u32 s{r}, s{lo}, {off}"); P(f"s_addc_u32 s{r+1}, s{lo+1}, 0")
    P(f"s_mov_b32 s{r+2}, {size}"); P(f"s_mov_b32 s{r+3}, 0x20000")

def rawreg(i,m,d):
    b=U+32*i+8*m
    if i==0 and m==0: return [b+7,b+4,b+5,b+6][d]
    return b+4+d

def poll(P, name, dat, soff, pre_issued=True):
    def issue():
        return [f"buffer_load_dwordx4 {v(dat,4)}, v{vGpoll}, {s(SWS,4)}, {soff} offen sc1",
                f"buffer_load_dwordx4 {v(dat+4,4)}, v{vGpoll}, {s(SWS,4)}, {soff} offen offset:{16<<RECSH} sc1"]
    P(f"s_mov_b32 s{sCnt}, 0x4000")
    P(f"L_{name}_chk:")
    P("s_waitcnt vmcnt(0)")
    P(f"v_xor_b32 v60, v{vTag}, v{dat+1}")
    P(f"v_xor_b32 v61, v{vTag}, v{dat+3}")
    P(f"v_xor_b32 v62, v{vTag}, v{dat+5}")
    P(f"v_xor_b32 v63, v{vTag}, v{dat+7}")
    P("v_or3_b32 v60, v60, v61, v62")
    P("v_or_b32 v60, v60, v63")
    P("v_cmp_ne_u32 vcc, 0, v60")
    P(f"s_cbranch_vccz L_{name}_ok")
    P(f"s_sub_u32 s{sCnt}, s{sCnt}, 1")
    P(f"s_cbranch_scc1 L_{name}_ok")
    for t in issue(): P.raw(t)
    P(f"s_branch L_{name}_chk")
    P(f"L_{name}_ok:")
    P.clear_vm()
def poll_issue(P, dat, soff):
    P(f"buffer_load_dwordx4 {v(dat,4)}, v{vGpoll}, {s(SWS,4)}, {soff} offen sc1")
    P(f"buffer_load_dwordx4 {v(dat+4,4)}, v{vGpoll}, {s(SWS,4)}, {soff} offen offset:{16<<RECSH} sc1")
def publish(P, name, soff, needs):
    P(f"v_mov_b32 v{vPub+1}, v{vTag}"); P(f"v_mov_b32 v{vPub+3}, v{vTag}")
    P(f"v_mov_b32 v61, s{sPLW}")
    P("s_mov_b64 exec, 1")
    P.I(f"ds_write_b128 v61, {v(vPub,4)}", tag=("pw",name))
    P("s_mov_b64 exec, -1")
    P(f"v_and_b32 v60, 3, v{vL}")
    P(f"v_lshlrev_b32 v60, 4, v60")
    P(f"v_add_u32 v60, {PUBL}, v60")
    P.I("s_barrier", needs=[("pw",name)]+list(needs))
    P.I(f"ds_read_b128 v[56:59], v60", tag=("pr",name))
    P.I(f"buffer_store_dwordx4 v[56:59], v{vGpub}, {s(SWS,4)}, {soff} offen sc1", needs=[("pr",name)])
def gather_reduce(P, name, dat):
    P(f"v_add_f32 v{dat}, v{dat}, v{dat+4}")
    P(f"v_add_f32 v{dat+1}, v{dat+2}, v{dat+6}")
    P(f"v_and_b32 v62, 3, v{vL}")
    P(f"v_lshl_add_u32 v62, v62, 5, s{sRedB}")
    regs=[dat,dat+1]; tmps=[60,61]
    for sh in (8,4):
        for r in regs:
            P(f"v_add_f32_dpp v{r}, v{r}, v{r} row_ror:{sh} row_mask:0xf bank_mask:0xf")
    for which in (16,32):
        for r,t in zip(regs,tmps): P(f"v_mov_b32 v{t}, v{r}")
        for r,t in zip(regs,tmps): P(f"v_permlane{which}_swap_b32 v{r}, v{t}")
        for r,t in zip(regs,tmps): P(f"v_add_f32 v{r}, v{r}, v{t}")
    P("s_mov_b64 exec, 15")
    P.I(f"ds_write_b64 v62, {pk(dat)}", tag=("rw",name))
    P("s_mov_b64 exec, -1")
    P(f"s_lshl_b32 s56, s{sW}, 5")
    P(f"s_add_u32 s56, s56, {RED}")
    P("v_mov_b32 v60, s56")
    P.I("s_barrier", needs=[("rw",name)])
    P.I(f"ds_read_b128 {v(dat,4)}, v60", tag=("rr0",name))
    P.I(f"ds_read_b128 {v(dat+4,4)}, v60 offset:16", tag=("rr1",name))
    P.I(f"v_add_f32 v{dat}, v{dat}, v{dat+2}", needs=[("rr0",name)])
    P(f"v_add_f32 v{dat+1}, v{dat+1}, v{dat+3}")
    P.I(f"v_add_f32 v{dat+4}, v{dat+4}, v{dat+6}", needs=[("rr1",name)])
    P(f"v_add_f32 v{dat+5}, v{dat+5}, v{dat+7}")
    P(f"v_add_f32 v{dat}, v{dat}, v{dat+4}")
    P(f"v_add_f32 v{dat+2}, v{dat+1}, v{dat+5}")

def silu_core(F, X, E, packed, coef):
    n=len(X)
    if packed:
        for k in range(0,n,2):
            (a_,b_)=coef(k)
            sa,sb=a_&1,b_&1
            F.append(It(f"v_pk_fma_f32 {pk(X[k])}, {pk(X[k])}, {pk(a_&~1)}, {pk(b_&~1)} op_sel:[0,{sa},{sb}] op_sel_hi:[1,{sa},{sb}]"))
        for k in range(n): F.append(It(f"v_exp_f32 v{E+k}, v{X[k]}"))
        for k in range(0,n,2): F.append(It(f"v_pk_add_f32 {pk(E+k)}, {pk(E+k)}, {s(SONE,2)}"))
        for k in range(n): F.append(It(f"v_rcp_f32 v{E+k}, v{E+k}"))
        for k in range(0,n,2): F.append(It(f"v_pk_mul_f32 {pk(X[k])}, {pk(X[k])}, {pk(E+k)}"))
    else:
        for k in range(n):
            (a_,b_)=coef(k)
            F.append(It(f"v_fma_f32 v{X[k]}, v{X[k]}, v{a_}, v{b_}"))
        for k in range(n): F.append(It(f"v_exp_f32 v{E+k}, v{X[k]}"))
        for k in range(n): F.append(It(f"v_add_f32 v{E+k}, 1.0, v{E+k}"))
        for k in range(n): F.append(It(f"v_rcp_f32 v{E+k}, v{E+k}"))
        for k in range(n): F.append(It(f"v_mul_f32 v{X[k]}, v{X[k]}, v{E+k}"))

def t1_fill(i, packed=False):
    F=[]
    for kp in range(4):
        X=[U+32*i+8*m+2*kp+kk for m in range(4) for kk in range(2)]
        silu_core(F, X, TE, packed, lambda k:(vK1, B1+4*i+k//2))
        for kk in range(2):
            F.append(It(f"v_cvt_pk_bf16_f32 v{TP+2*kk}, v{X[0+kk]}, v{X[2+kk]}"))
            F.append(It(f"v_cvt_pk_bf16_f32 v{TP+2*kk+1}, v{X[4+kk]}, v{X[6+kk]}"))
        for kk in range(2):
            k=2*kp+kk
            if k in (1,2):
                mk = vMA if k==1 else vMB
                F.append(It(f"v_and_b32 v{TP+2*kk}, v{TP+2*kk}, v{mk}"))
                F.append(It(f"v_and_b32 v{TP+2*kk+1}, v{TP+2*kk+1}, v{mk}"))
            tag=("Tw",0,i) if k==7 else None
            F.append(It(f"ds_write_b64 v{vT1W}, {pk(TP+2*kk)} offset:{i*PP+16*k}", tag=tag))
    return F

def t2_interior(i, packed=False):
    F=[]
    for rp in range(2):
        if packed:
            X=[ACC1+16*(2*rp+rr)+4*i+j for rr in range(2) for j in range(4)]
            n=8
            for k in range(0,n,2):
                j=k&3
                F.append(It(f"v_pk_fma_f32 {pk(X[k])}, {pk(X[k])}, {pk(A2+4*i+j)}, {pk(B2+4*i+j)}"))
            for k in range(n): F.append(It(f"v_exp_f32 v{TE+k}, v{X[k]}"))
            for k in range(0,n,2): F.append(It(f"v_pk_add_f32 {pk(TE+k)}, {pk(TE+k)}, {s(SONE,2)}"))
            for k in range(n): F.append(It(f"v_rcp_f32 v{TE+k}, v{TE+k}"))
            for k in range(0,n,2): F.append(It(f"v_pk_mul_f32 {pk(X[k])}, {pk(X[k])}, {pk(TE+k)}"))
        else:
            X=[ACC1+16*(2*rp+rr)+4*i+j for rr in range(2) for j in range(4)]
            silu_core(F, X, TE, False, lambda k:(A2+4*i+(k&3), B2+4*i+(k&3)))
        for rr in range(2):
            F.append(It(f"v_cvt_pk_bf16_f32 v{TP+2*rr}, v{X[4*rr]}, v{X[4*rr+1]}"))
            F.append(It(f"v_cvt_pk_bf16_f32 v{TP+2*rr+1}, v{X[4*rr+2]}, v{X[4*rr+3]}"))
        for rr in range(2):
            F.append(It(f"ds_write_b64 v{vT2W}, {pk(TP+2*rr)} offset:{i*PP+(2*rp+rr)*ROWP}"))
    return F
def t2_halo(i, packed=False):
    F=[]
    for ks in ((0,1),(2,)):
        X=[]
        for n,k in enumerate(ks):
            raw=HR+6*i+2*k
            for d in range(2):
                x0=32+4*n+2*d
                F.append(It(f"v_lshlrev_b32 v{x0}, 16, v{raw+d}", needs=[("halo",i,k)]))
                F.append(It(f"v_and_b32 v{x0+1}, s{SMASK}, v{raw+d}"))
                X+= [x0,x0+1]
        n=len(X)
        if packed:
            for k in range(0,n,2):
                j=k&3
                F.append(It(f"v_pk_fma_f32 {pk(X[k])}, {pk(X[k])}, {pk(A2+4*i+j)}, {pk(B2+4*i+j)}"))
            for k in range(n): F.append(It(f"v_exp_f32 v{TE+k}, v{X[k]}"))
            for k in range(0,n,2): F.append(It(f"v_pk_add_f32 {pk(TE+k)}, {pk(TE+k)}, {s(SONE,2)}"))
            for k in range(n): F.append(It(f"v_rcp_f32 v{TE+k}, v{TE+k}"))
            for k in range(0,n,2): F.append(It(f"v_pk_mul_f32 {pk(X[k])}, {pk(X[k])}, {pk(TE+k)}"))
        else:
            silu_core(F, X, TE, False, lambda k:(A2+4*i+(k&3), B2+4*i+(k&3)))
        for nn,k in enumerate(ks):
            F.append(It(f"v_cvt_pk_bf16_f32 v{TP+2*nn}, v{X[4*nn]}, v{X[4*nn+1]}"))
            F.append(It(f"v_cvt_pk_bf16_f32 v{TP+2*nn+1}, v{X[4*nn+2]}, v{X[4*nn+3]}"))
        for nn,k in enumerate(ks):
            F.append(It(f"v_and_b32 v{TP+2*nn}, v{TP+2*nn}, v{vHM+k}"))
            F.append(It(f"v_and_b32 v{TP+2*nn+1}, v{TP+2*nn+1}, v{vHM+k}"))
        for nn,k in enumerate(ks):
            tag=("Tw",1,i) if k==2 else None
            F.append(It(f"ds_write_b64 v{vHW+k}, {pk(TP+2*nn)} offset:{i*PP}", tag=tag))
    return F

def ring_load(cc, f):
    so = f"s{S4K-1+f//4}" if f//4 else "0"
    return It(f"buffer_load_dwordx4 {a(RING+4*f,4)}, v{vWV}, {s(SWF,4)}, {so} offen offset:{1024*(f%4)} sc1", tag=("W",cc,f))

def conv_loop(P, conv, fills, pre=None):
    ACC = ACC1 if conv==0 else ACC2
    seq=[]
    for c in range(4):
        if c<3:
            for p in range(2):
                for dx in range(3):
                    for dy in range(3):
                        for r in range(4):
                            seq.append(dict(c=c,f=(p*3+dx)*3+dy,key=(c,p,dx,r+dy,-1),r=r))
        else:
            for r in range(4):
                for p in range(2):
                    for dx in range(3):
                        for dy in range(3):
                            seq.append(dict(c=c,f=(p*3+dx)*3+dy,key=(c,p,dx,r+dy,r),r=r))
    N=len(seq)
    loads=[]; kidx={}
    for n,m in enumerate(seq):
        k=m["key"]
        if k not in kidx:
            kidx[k]=len(loads); loads.append(dict(key=k,first=n,last=n))
        loads[kidx[k]]["last"]=n
    BAR=63
    gaps=[[] for _ in range(N)]; preamble=[]
    prev=-1
    for n,L in enumerate(loads):
        c,p,dx,row,_=L["key"]; slot=n%12; L["slot"]=slot
        pos=L["first"]-8
        if n>=12: pos=max(pos, loads[n-12]["last"])
        if c>0: pos=max(pos, 72*(c-1)+BAR+1)
        if pos>=0: pos=max(pos, prev+1)
        assert pos<L["first"]-2 or pos<0 or L["first"]<3, (n,pos,L)
        off=(8*p+c)*PP+row*ROWP+dx*16
        it=It(f"ds_read_b128 {a(ACT+4*slot,4)}, v{vRD} offset:{off}", tag=("act",conv,n))
        if pos<0: preamble.append(it)
        else: gaps[pos].append(it); prev=pos
    last={}
    for n,m in enumerate(seq): last[(m["c"],m["f"])]=n
    for (c,f),n in last.items():
        cc=4*conv+c
        if cc+1<8: gaps[n].append(ring_load(cc+1,f))
    for c in range(4):
        if 4*conv+c+1<8:
            gaps[72*c].append(It(f"v_add_u32 v{vWV}, {18*1024}, v{vWV}"))
    for c in range(4):
        for (items,st,en) in fills.get(c,[]):
            sp=spread(72,items,st,en)
            for g in range(72): gaps[72*c+g]+=sp[g]
        if c<3:
            gaps[72*c+BAR].append(It("s_barrier", needs=[("Tw",conv,c+1)]))
    for it in preamble: P.add(it)
    seenW=set(); started=set()
    for n,m in enumerate(seq):
        cc=4*conv+m["c"]; needs=[("act",conv,kidx[m["key"]])]
        if (cc,m["f"]) not in seenW:
            seenW.add((cc,m["f"])); needs.append(("W",cc,m["f"]))
        L=loads[kidx[m["key"]]]
        acc=v(ACC+16*m["r"],16); w=a(RING+4*m["f"],4); act=a(ACT+4*L["slot"],4)
        cin=acc
        if conv==0 and m["r"] not in started:
            started.add(m["r"]); cin="0"
        if conv==0: P.I(f"v_mfma_f32_32x32x16_bf16 {acc}, {w}, {act}, {cin}", needs=needs)
        else:       P.I(f"v_mfma_f32_32x32x16_bf16 {acc}, {act}, {w}, {cin}", needs=needs)
        for it in gaps[n]: P.add(it)

def h_row_store(r):
    F=[]
    va = vHS if r in (0,3) else vHSm
    for m in range(2):
        so={(0,0):"0",(1,0):f"s{S4K}",(0,1):f"s{S512K}",(1,1):f"s{S516K}"}[(r>>1,m)]
        F.append(It(f"buffer_store_dwordx4 {v(32+4*m,4)}, v{va}, {s(SH,4)}, {so} offen offset:{2048*(r&1)} sc1"))
    return F
def pack_swap(R):
    F=[]
    for i in range(4):
        F.append(It(f"v_cvt_pk_bf16_f32 v{32+2*i}, v{R+4*i}, v{R+4*i+1}"))
        F.append(It(f"v_cvt_pk_bf16_f32 v{32+2*i+1}, v{R+4*i+2}, v{R+4*i+3}"))
    for m in range(2):
        F.append(It(f"v_permlane32_swap_b32 v{32+4*m}, v{32+4*m+2}"))
        F.append(It(f"v_permlane32_swap_b32 v{32+4*m+1}, v{32+4*m+3}"))
    return F
def conv1_row_epi(r, packed):
    R=ACC1+16*r; F=[]
    if packed:
        for k in range(0,16,2): F.append(It(f"v_pk_add_f32 {pk(R+k)}, {pk(R+k)}, {pk(EP+k)}"))
    else:
        for k in range(16): F.append(It(f"v_add_f32 v{R+k}, v{R+k}, v{EP+k}", needs=[("ep",k//4)]))
    F+=pack_swap(R)+h_row_store(r)
    if packed:
        for k in range(0,16,2):
            F.append(It(f"v_pk_add_f32 v[40:41], v[40:41], {pk(R+k)}"))
            F.append(It(f"v_pk_fma_f32 v[42:43], {pk(R+k)}, {pk(R+k)}, v[42:43]"))
    else:
        for k in range(16):
            F.append(It(f"v_add_f32 v{40+(k&1)}, v{40+(k&1)}, v{R+k}"))
            F.append(It(f"v_fmac_f32 v{42+(k&1)}, v{R+k}, v{R+k}"))
    return F
def conv2_row_epi(r, packed):
    R=ACC2+16*r; F=[]
    if packed:
        for k in range(0,16,2): F.append(It(f"v_pk_mul_f32 {pk(R+k)}, {pk(R+k)}, {s(SNLN,2)}"))
    else:
        for k in range(16): F.append(It(f"v_mul_f32 v{R+k}, s{SNLN}, v{R+k}"))
    F+=pack_swap(R)
    for m in range(2):
        F.append(It(f"buffer_store_dwordx4 {v(32+4*m,4)}, v{vXO}, {s(SO,4)}, 0 offen offset:{256*r+32*m}"))
    return F

def gen():
    P=Prog()
    P(f".globl {NAME}"); P(".p2align 8"); P(f".type {NAME},@function"); P(f"{NAME}:")
    P("s_cmp_ge_u32 s2, 256")
    P("s_cbranch_scc1 L_end")
    P("s_load_dwordx16 s[4:19], s[0:1], 0")
    P("s_load_dwordx8 s[20:27], s[0:1], 64")
    P("s_getpc_b64 s[98:99]")
    P("L_pc:")
    P("v_lshlrev_b32 v2, 7, v0")
    P("v_min_u32 v2, L_codeend-L_pc-4, v2")
    P("global_load_dword v114, v2, s[98:99]")
    if PROF:
        P(f"v_mov_b32 v{vSR}, 0"); P(f"v_mov_b32 v{vSC}, 0")
    m9,s9=magic(9,63); m5,s5=magic(5,63); m3,s3_=magic(3,15)
    P(f"""
    v_lshrrev_b32 v2, 6, v0
    v_and_b32 v{vL}, 63, v0
    v_readfirstlane_b32 s{sW}, v2
    s_and_b32 s3, s2, 7
    s_lshr_b32 s56, s2, 3
    s_lshr_b32 s{sBt}, s3, 2
    s_and_b32 s3, s3, 3
    s_lshl_b32 s{sRow0}, s3, 5
    s_and_b32 s57, s56, 0x1c
    s_add_u32 s{sRow0}, s{sRow0}, s57
    s_and_b32 s57, s56, 3
    s_add_u32 s{sT}, s{sRow0}, s57
    s_lshl_b32 s{sCol0}, s57, 5
    v_min_u32 v60, 35, v{vL}
    v_mul_u32_u24 v61, {m9}, v60
    v_lshrrev_b32 v61, {s9}, v61            ; o
    v_mul_u32_u24 v62, 9, v61
    v_sub_u32 v62, v60, v62
    s_lshr_b32 s56, s{sT}, 4                ; oq
    s_and_b32 s57, s{sT}, 15                ; co
    s_lshl_b32 s58, s{sW}, 5
    s_lshl_b32 s59, s56, 2
    s_add_u32 s58, s58, s59
    s_mul_i32 s58, s58, 2304
    s_mul_i32 s59, s57, 144
    s_add_u32 s58, s58, s59
    v_mul_u32_u24 v63, 2304, v61
    v_lshl_add_u32 v63, v62, 4, v63
    v_add_u32 v63, s58, v63
    """)
    P(f"""
    v_min_u32 v48, 59, v{vL}
    v_mul_u32_u24 v49, {m5}, v48
    v_lshrrev_b32 v49, {s5}, v49            ; qr
    v_mul_u32_u24 v50, 5, v49
    v_sub_u32 v50, v48, v50                 ; seg
    v_and_b32 v51, 1, v49                   ; q
    v_lshrrev_b32 v52, 1, v49               ; rr
    s_sub_u32 s56, s{sRow0}, 1
    v_add_u32 v53, s56, v52                 ; y
    v_max_i32 v54, 0, v53
    v_min_u32 v54, 127, v54                 ; yc
    s_lshl_b32 s56, s{sBt}, 22
    s_lshl_b32 s57, s{sW}, 20
    s_add_u32 s56, s56, s57
    s_lshl_b32 s57, s{sCol0}, 1
    s_add_u32 s56, s56, s57
    s_sub_u32 s56, s56, 4
    v_lshlrev_b32 v55, 17, v51
    v_lshl_add_u32 v55, v54, 8, v55
    v_lshl_add_u32 v55, v50, 4, v55
    v_add_u32 v55, s56, v55                 ; V0
    v_add_u32 v56, {32768}, v55             ; V1
    s_mov_b32 s{SX+2}, {NX}
    s_mov_b32 s{SX+3}, 0x20000
    s_mov_b32 s{SWS+2}, {WS_LOW}
    s_mov_b32 s{SWS+3}, 0x20000
    s_mov_b32 s{S32K}, 32768
    s_mov_b32 s{S64K}, 65536
    s_mov_b32 s{S96K}, 98304
    """)
    stamp(P)
    P("s_waitcnt lgkmcnt(0)")
    P.I("global_load_dwordx4 v[64:67], v63, s[12:13]", tag="Wraw0")
    P.I("global_load_dwordx4 v[68:71], v63, s[20:21]", tag="Wraw1")
    P(f"""
    s_mov_b32 s{SX}, s4
    s_mov_b32 s{SX+1}, s5
    s_mov_b32 s{SWS}, s26
    s_mov_b32 s{SWS+1}, s27
    """)
    P.I(f"buffer_load_dword v{vTag}, off, {s(SWS,4)}, 0 sc1", tag="E")
    so=["0",f"s{S32K}",f"s{S64K}",f"s{S96K}"]
    P.I(f"buffer_load_dword v{rawreg(0,0,0)}, v55, {s(SX,4)}, 0 offen")
    P.I(f"buffer_load_dwordx3 {v(rawreg(0,0,1),3)}, v55, {s(SX,4)}, 0 offen offset:4", tag=("x",0,0))
    for m in range(1,4):
        P.I(f"buffer_load_dwordx4 {v(rawreg(0,m,0),4)}, v56, {s(SX,4)}, {so[m-1]} offen", tag=("x",0,m))
    for i in range(1,4):
        P(f"v_add_u32 v56, {(7 if i==1 else 8)*32768}, v56")
        for m in range(4):
            P.I(f"buffer_load_dwordx4 {v(rawreg(i,m,0),4)}, v56, {s(SX,4)}, {so[m]} offen", tag=("x",i,m))
    P(f"""
    s_lshl_b32 s56, s{sW}, 6
    v_lshlrev_b32 v57, 3, v51
    v_add_u32 v57, s56, v57
    """)
    for i in range(4): P.I(f"global_load_dwordx2 {v(88+2*i,2)}, v57, s[8:9] offset:{16*i}", tag=("g1",i))
    for i in range(4): P.I(f"global_load_dwordx2 {v(96+2*i,2)}, v57, s[10:11] offset:{16*i}", tag=("be1",i))
    stamp(P)
    P(f"s_mul_i32 s56, s{sBt}, {WF_B}")
    P(f"s_add_u32 s56, s56, {WS_WF}")
    P(f"s_add_u32 s{SWF}, s26, s56"); P(f"s_addc_u32 s{SWF+1}, s27, 0")
    P(f"s_mov_b32 s{SWF+2}, {WF_B}"); P(f"s_mov_b32 s{SWF+3}, 0x20000")
    srd(P,SH,26,NX,WS_H)
    srd(P,SO,22,NX)
    P(f"s_mul_i32 s56, s{sBt}, 2304")
    P(f"s_add_u32 s{SA}, s6, s56"); P(f"s_addc_u32 s{SA+1}, s7, 0")
    P(f"s_mov_b32 s{SA+2}, 2304"); P(f"s_mov_b32 s{SA+3}, 0x20000")
    srd(P,SB,14,294912)
    P(f"s_mov_b32 s{S_G2}, {G2_OFF}")
    for k in range(1,5): P(f"s_mov_b32 s{S4K-1+k}, {4096*k}")
    for r,val in ((S128K,131072),(S192K,196608),(S256K,262144),(S512K,524288),(S768K,786432),(S516K,528384),(SW2,73728)):
        P(f"s_mov_b32 s{r}, {val}")
    P(f"s_mov_b32 s{SONE}, 1.0"); P(f"s_mov_b32 s{SONE+1}, 1.0")
    P(f"s_mov_b32 s{SMASK}, 0xffff0000")
    P(f"s_mov_b32 s{SNL}, {fhex(-LOG2E)}"); P(f"s_mov_b32 s{SNL+1}, {fhex(-LOG2E)}")
    P(f"s_mov_b32 s{SNLN}, {fhex(-LN2)}"); P(f"s_mov_b32 s{SNLN+1}, {fhex(-LN2)}")
    P(f"""
    s_mul_i32 s56, s{sW}, 1280
    s_add_u32 s56, s56, {TILE2}
    v_lshl_add_u32 v58, v60, 4, s56
    v_mul_u32_u24 v59, 144, v61
    v_lshl_add_u32 v59, v62, 1, v59
    v_add_u32 v59, s56, v59
    v_mul_u32_u24 v122, {m3}, v62
    v_lshrrev_b32 v122, {s3_}, v122         ; dy
    v_mul_u32_u24 v123, 3, v122
    v_sub_u32 v123, v62, v123               ; dx
    v_mul_u32_u24 v123, 3, v123
    v_add_u32 v123, v123, v122              ; dx*3+dy
    v_lshlrev_b32 v123, 10, v123
    v_lshl_add_u32 v123, v61, 4, v123
    s_and_b32 s57, s{sT}, 15                ; co
    s_and_b32 s58, s57, 3
    s_lshl_b32 s58, s58, 1
    s_lshr_b32 s59, s57, 3
    s_add_u32 s58, s58, s59
    s_mul_i32 s58, s58, {9*1024}
    s_lshr_b32 s59, s57, 2
    s_and_b32 s59, s59, 1
    s_lshl_b32 s59, s59, 9                  ; 32*16
    s_add_u32 s58, s58, s59
    s_lshr_b32 s59, s{sT}, 4
    s_lshl_b32 s59, s59, 6                  ; 4*16
    s_add_u32 s58, s58, s59
    s_mul_i32 s59, s{sW}, 147456
    s_add_u32 s58, s58, s59
    v_add_u32 v123, s58, v123
    v_mov_b32 v124, {OOB}
    v_cmp_gt_u32 vcc, 36, v{vL}
    v_cndmask_b32 v123, v124, v123, vcc
    v_lshlrev_b32 v{vWV}, 4, v{vL}
    v_add_u32 v{vWV}, s59, v{vWV}
    """)
    P.I("ds_write_b128 v58, v[64:67]", needs=["Wraw0"])
    P.I("ds_write_b128 v58, v[68:71] offset:640", needs=["Wraw1"])
    for c in range(2):
        for j in range(8):
            P.I(f"ds_read_u16 v{72+8*c+j}, v59 offset:{640*c+18*j}", tag=("wg",c,j))
    for c in range(2):
        for k in range(4):
            P.I(f"v_lshl_or_b32 v{64+4*c+k}, v{72+8*c+2*k+1}, 16, v{72+8*c+2*k}", needs=[("wg",c,2*k+1)])
        P.I(f"buffer_store_dwordx4 {v(64+4*c,4)}, v123, {s(SWF,4)}, {'0' if c==0 else 's%d'%SW2} offen sc1", tag=("Wst",c))
    P(f"""
    v_lshlrev_b32 v124, 1, v0
    v_lshlrev_b32 v125, 8, v0
    s_lshl_b32 s56, s{sT}, 1
    v_add_u32 v125, s56, v125
    """)
    for k in range(5): P.I(f"buffer_load_short_d16_hi v{104+k}, v124, {s(SA,4)}, 0 offen offset:{512*k}", tag=("te",k))
    eso=["0",f"s{S64K}",f"s{S128K}",f"s{S192K}",f"s{S256K}"]
    for k in range(5): P.I(f"buffer_load_short_d16_hi v{109+k}, v125, {s(SB,4)}, {eso[k]} offen", tag=("we",k))
    P(f"""
    v_and_b32 v60, 31, v{vL}                ; p
    v_lshrrev_b32 v61, 5, v{vL}             ; h
    v_mul_u32_u24 v{vRD}, {4*PP}, v61
    v_lshl_add_u32 v{vRD}, v60, 4, v{vRD}
    v_add_u32 v{vRD}, 16, v{vRD}
    s_mul_i32 s56, s{sW}, {4*PP}
    v_mul_u32_u24 v{vT1W}, {ROWP}, v52
    v_lshl_add_u32 v{vT1W}, v50, 7, v{vT1W}
    v_lshl_add_u32 v{vT1W}, v51, 3, v{vT1W}
    v_add_u32 v{vT1W}, s56, v{vT1W}
    s_add_u32 s57, s56, {TILE2}
    v_lshlrev_b32 v62, 3, v61               ; 8h
    v_lshl_add_u32 v{vT2W}, v60, 4, v62
    s_add_u32 s58, s57, {ROWP+32}
    v_add_u32 v{vT2W}, s58, v{vT2W}
    s_cmp_eq_u32 s{sCol0}, 0
    s_cselect_b32 s58, 0, 7
    s_cmp_eq_u32 s{sCol0}, 96
    s_cselect_b32 s59, 4, 7
    v_mov_b32 v63, 0
    v_cmp_ne_u32 vcc, s58, v50
    v_cndmask_b32 v{vMA}, v63, -1, vcc
    v_cmp_ne_u32 vcc, s59, v50
    v_cndmask_b32 v{vMB}, v63, -1, vcc
    s_lshl_b32 s58, s{sBt}, {7+RECSH}
    s_add_u32 s58, s58, {WS_G1}
    s_lshl_b32 s59, s{sW}, {5+RECSH}
    s_add_u32 s59, s59, s58
    v_lshrrev_b32 v124, 2, v{vL}
    v_and_b32 v125, 3, v{vL}
    v_lshlrev_b32 v124, {RECSH}, v124
    v_lshl_add_u32 v124, v125, 4, v124
    v_add_u32 v{vGpoll}, s59, v124          ; lane=(producer16,g4)
    s_lshl_b32 s59, s{sW}, 3
    s_add_u32 s{sRedB}, s59, {RED}
    s_lshl_b32 s59, s{sW}, 4
    s_add_u32 s{sPLW}, s59, {PUBL}
    s_lshl_b32 s59, s{sT}, {RECSH}
    s_add_u32 s58, s58, s59
    v_mov_b32 v124, {OOB}
    v_lshl_add_u32 v125, v0, 4, s58
    v_cmp_gt_u32 vcc, 4, v0
    v_cndmask_b32 v{vGpub}, v124, v125, vcc
    s_lshl_b32 s58, s{sBt}, 7
    s_add_u32 s59, s58, s{sT}
    s_lshl_b32 s59, s59, 3
    s_add_u32 s59, s59, {WS_EMB}
    v_mov_b32 v125, s59
    v_cmp_eq_u32 vcc, 0, v0
    v_cndmask_b32 v{vEpub}, v124, v125, vcc
    s_lshl_b32 s59, s{sW}, 5
    s_add_u32 s58, s58, s59                 ; b*128+32w
    s_lshl_b32 s59, s58, 3
    s_add_u32 s59, s59, {WS_EMB}
    v_lshl_add_u32 v{vEpoll}, v60, 3, s59
    s_lshl_b32 s58, s58, 15
    s_lshl_b32 s59, s{sRow0}, 8
    s_add_u32 s58, s58, s59
    s_lshl_b32 s59, s{sCol0}, 1
    s_add_u32 s58, s58, s59
    v_lshlrev_b32 v{vXO}, 15, v60
    v_lshl_add_u32 v{vXO}, v61, 4, v{vXO}
    v_add_u32 v{vXO}, s58, v{vXO}
    s_lshl_b32 s58, s{sBt}, 4
    s_lshl_b32 s59, s{sW}, 2
    s_add_u32 s58, s58, s59
    s_lshl_b32 s58, s58, 18                 ; (b*16+4w)*16384*16
    s_lshl_b32 s59, s{sRow0}, 7
    s_add_u32 s59, s59, s{sCol0}
    s_lshl_b32 s59, s59, 4
    s_add_u32 s59, s58, s59
    v_lshlrev_b32 v{vHS}, 18, v61
    v_lshl_add_u32 v{vHS}, v60, 4, v{vHS}
    v_add_u32 v{vHS}, s59, v{vHS}
    v_add_u32 v63, 1, v60
    v_and_b32 v63, 30, v63
    v_cmp_eq_u32 vcc, 0, v63                ; p==31 -> 32&30=0 ; p==0 -> 1&30=0
    v_cndmask_b32 v{vHSm}, v124, v{vHS}, vcc
    """)
    def halo(k, rr, cc, extra_valid=None):
        P(f"""
        s_sub_u32 s59, s{sRow0}, 1
        v_add_u32 v122, s59, v{rr}
        s_sub_u32 s59, s{sCol0}, 1
        v_add_u32 v123, s59, v{cc}
        v_cmp_gt_u32 s[90:91], s{S128X}, v122
        v_cmp_gt_u32 vcc, s{S128X}, v123
        s_and_b64 vcc, vcc, s[90:91]
        """)
        if extra_valid: P(f"s_and_b64 vcc, vcc, {extra_valid}")
        P(f"""
        v_mov_b32 v126, 0
        v_cndmask_b32 v{vHM+k}, v126, -1, vcc
        v_mov_b32 v126, s{sRow0}
        v_cndmask_b32 v122, v126, v122, vcc
        v_mov_b32 v126, s{sCol0}
        v_cndmask_b32 v123, v126, v123, vcc
        v_lshl_add_u32 v122, v122, 7, v123
        v_lshl_add_u32 v122, v122, 4, v62
        v_add_u32 v{vHG+k}, s58, v122
        v_mul_u32_u24 v122, {ROWP}, v{rr}
        v_lshl_add_u32 v122, v{cc}, 4, v122
        v_add_u32 v122, v122, v62
        s_add_u32 s59, s57, 16
        v_add_u32 v{vHW+k}, s59, v122
        """)
    S128X=81
    P(f"s_mov_b32 s{S128X}, 128")
    P("v_mov_b32 v120, 0"); halo(0,120,60)
    P("v_mov_b32 v120, 5"); halo(1,120,60)
    P(f"""
    v_add_u32 v120, -7, v60
    v_add_u32 v121, -3, v60
    v_cmp_gt_u32 vcc, 8, v60
    v_cndmask_b32 v120, v120, v121, vcc     ; p<8 ? p-3 : p-7
    v_mov_b32 v121, 33
    v_cndmask_b32 v121, v121, 0, vcc        ; p<8 ? 0 : 33
    v_add_u32 v118, 30, v60
    v_cmp_gt_u32 vcc, 4, v60
    v_cndmask_b32 v120, v120, 5, vcc
    v_cndmask_b32 v121, v121, v118, vcc
    v_add_u32 v118, 32, v60
    v_cmp_gt_u32 vcc, 2, v60
    v_cndmask_b32 v120, v120, 0, vcc
    v_cndmask_b32 v121, v121, v118, vcc
    v_cmp_gt_u32 s[96:97], 12, v60
    v_cndmask_b32 v120, 0, v120, s[96:97]
    v_mov_b32 v118, 36
    v_cndmask_b32 v121, v118, v121, s[96:97]
    """)
    halo(2,120,121,"s[96:97]")
    P(f"""
    v_cmp_gt_u32 vcc, s{S128X}, v53
    v_cndmask_b32 v118, 0, 1.0, vcc
    v_add_u32 v119, -1, v52
    v_cmp_gt_u32 s[90:91], 4, v119
    v_cmp_gt_u32 vcc, 60, v{vL}
    s_and_b64 s[90:91], s[90:91], vcc
    v_cmp_ne_u32 vcc, 4, v50
    s_and_b64 s[96:97], s[90:91], vcc       ; B: seg != 4
    v_cmp_ne_u32 vcc, 0, v50
    s_and_b64 s[90:91], s[90:91], vcc       ; A: seg != 0
    v_mov_b32 v119, 0x3f803f80
    """)
    for r in range(122,128): P(f"v_mov_b32 v{r}, 0")
    first=True
    for i in range(4):
        for m in range(4):
            for d in range(4):
                sr,qr={0:(122,123),1:(124,125),2:(126,127),3:(124,125)}[d]
                x=rawreg(i,m,d)
                P.I(f"v_dot2_f32_bf16 v{sr}, v{x}, v119, v{sr}", needs=[("x",i,m)])
                P.I(f"v_dot2_f32_bf16 v{qr}, v{x}, v{x}, v{qr}")
    stamp(P)
    P(f"""
    v_add_f32 v124, v124, v126
    v_add_f32 v125, v125, v127
    v_cndmask_b32 v122, 0, v122, s[90:91]
    v_cndmask_b32 v123, 0, v123, s[90:91]
    v_cndmask_b32 v124, 0, v124, s[96:97]
    v_cndmask_b32 v125, 0, v125, s[96:97]
    v_add_f32 v{vPub}, v122, v124
    v_add_f32 v{vPub+2}, v123, v125
    """)
    P(f"s_mov_b32 s56, 0x9E3779B1")
    P.I(f"v_mul_lo_u32 v{vTag}, v{vTag}, s56", needs=["E"])
    P(f"v_add_u32 v{vTag}, 0x7F4A7C15, v{vTag}")
    allreduce(P,[vPub,vPub+2],[122,123])
    publish(P,"g1","0",[("Wst",0),("Wst",1)])
    PD=48
    poll_issue(P,PD,"0")
    stamp(P)
    P.I(f"v_mul_f32 v117, s{SNL}, v118")
    GH=72
    for i in range(4):
        for d in range(2):
            gr=88+2*i+d; br=96+2*i+d; m=2*d
            P.I(f"v_lshlrev_b32 v{GH+4*i+m}, 16, v{gr}", needs=[("g1",i)])
            P.I(f"v_and_b32 v{GH+4*i+m+1}, s{SMASK}, v{gr}")
            P.I(f"v_lshlrev_b32 v{B1+4*i+m}, 16, v{br}", needs=[("be1",i)])
            P.I(f"v_and_b32 v{B1+4*i+m+1}, s{SMASK}, v{br}")
    for k in range(16): P(f"v_mul_f32 v{B1+k}, v{B1+k}, v117")
    for i in range(4):
        for d in range(2):
            gr=88+2*i+d
            P(f"v_and_b32 v{120+2*d}, 0xffff, v{gr}")
            P(f"v_lshrrev_b32 v{121+2*d}, 16, v{gr}")
        for m in range(4):
            b=U+32*i+8*m; glo=120+m; ghi=GH+4*i+m
            for d in range(4):
                x=rawreg(i,m,d)
                lo=f"v_dot2_f32_bf16 v{b+2*d}, v{x}, v{glo}, 0"
                hi=f"v_dot2_f32_bf16 v{b+2*d+1}, v{x}, v{ghi}, 0"
                if b+2*d==x: P(hi); P(lo)
                else: P(lo); P(hi)
    for k in range(5): P.I(f"v_mul_f32 v{120+k}, s{SNL}, v{104+k}", needs=[("te",k)])
    for k in range(5): P(f"v_exp_f32 v{120+k}, v{120+k}")
    for k in range(5): P(f"v_add_f32 v{120+k}, 1.0, v{120+k}")
    for k in range(5): P(f"v_rcp_f32 v{120+k}, v{120+k}")
    for k in range(5): P(f"v_mul_f32 v{120+k}, v{120+k}, v{104+k}")
    P.I("v_mul_f32 v114, v120, v109", needs=[("we",0)])
    for k in range(1,5): P.I(f"v_fmac_f32 v114, v{120+k}, v{109+k}", needs=[("we",k)])
    allreduce(P,[114],[115])
    P(f"s_lshl_b32 s56, s{sW}, 2")
    P(f"s_add_u32 s56, s56, {EMBP}")
    P("v_mov_b32 v115, s56")
    P("ds_write_b32 v115, v114")
    stamp(P)
    poll(P,"p1",PD,"0")
    stamp(P)
    gather_reduce(P,"g1",PD)
    P(f"""
    v_mul_f32 v60, {fhex(INV_N)}, v{PD}          ; mean
    v_mul_f32 v61, {fhex(INV_N)}, v{PD+2}
    v_fma_f32 v61, -v60, v60, v61
    v_max_f32 v61, 0, v61
    v_add_f32 v61, {fhex(EPS)}, v61
    v_rsq_f32 v61, v61
    v_mul_f32 v{vK1}, v61, v117                  ; K1 = -log2e*flag*rstd
    v_mul_f32 v60, -v60, v{vK1}                  ; -K1*mean
    """.replace("v_mul_f32 v60, -v60, v6","v_mul_f32_e64 v60, -v60, v6"))
    for k in range(16): P(f"v_fma_f32 v{B1+k}, v60, v{GH+k}, v{B1+k}")
    F=t1_fill(0,packed=True)
    rl=[ring_load(0,f) for f in range(18)]
    step=len(F)//19
    n=0
    for k,it in enumerate(F):
        P.add(it)
        if (k+1)%step==0 and n<18: P.add(rl[n]); n+=1
    while n<18: P.add(rl[n]); n+=1
    P.I("s_barrier", needs=[("Tw",0,0)])
    P("s_waitcnt lgkmcnt(0)")
    stamp(P)
    embpub=[It(f"v_mov_b32 v60, {EMBP}"),
            It("ds_read_b128 v[44:47]".replace("44:47","60:63")+", v60", tag="embp"),
            It("v_add_f32 v60, v60, v61", needs=["embp"]),
            It("v_add_f32 v62, v62, v63"),
            It("v_add_f32 v60, v60, v62"),
            It(f"v_mul_f32 v60, s{SNL}, v60"),
            It(f"v_mov_b32 v61, v{vTag}"),
            It(f"buffer_store_dwordx2 v[60:61], v{vEpub}, {s(SWS,4)}, 0 offen sc1")]
    embld=[It(f"buffer_load_dwordx2 {pk(EG)}, v{vEpoll}, {s(SWS,4)}, 0 offen sc1", tag="eg")]
    embchk=[It(f"v_cmp_ne_u32 vcc, v{vTag}, v{EG+1}", needs=["eg"]),
            It("s_cbranch_vccz L_e_ok")]
    slow=[f"s_mov_b32 s{sCnt}, 0x4000","L_e_re:",
          f"buffer_load_dwordx2 {pk(EG)}, v{vEpoll}, {s(SWS,4)}, 0 offen sc1","s_waitcnt vmcnt(0)",
          f"v_cmp_ne_u32 vcc, v{vTag}, v{EG+1}","s_cbranch_vccz L_e_ok",
          f"s_sub_u32 s{sCnt}, s{sCnt}, 1","s_cbranch_scc0 L_e_re"]
    embchk+=[It(t,raw=True,cost=0) for t in slow]+[It("L_e_ok:",cost=0)]
    embchk+=[It(f"v_and_b32 v60, 31, v{vL}"),
             It(f"v_lshlrev_b32 v60, 2, v60"),
             It(f"s_lshl_b32 s56, s{sW}, 7"),
             It(f"s_add_u32 s56, s56, {ES}"),
             It(f"v_add_u32 v60, s56, v60"),
             It(f"ds_write_b32 v60, v{EG}"),
             It(f"v_lshrrev_b32 v61, 5, v{vL}"),
             It(f"v_lshl_add_u32 v61, v61, 4, s56")]
    embchk+=[It(f"ds_read_b128 {v(EP+4*i,4)}, v61 offset:{32*i}", tag=("ep",i)) for i in range(4)]
    c3pre=[It(f"v_mov_b32 v{r}, 0") for r in (40,41,42,43)]
    c3pre+=[It(f"v_lshrrev_b32 v44, 5, v{vL}"), It(f"s_lshl_b32 s56, s{sW}, 6"), It(f"v_lshl_add_u32 v44, v44, 3, s56")]
    for r in range(4):
        for m in range(2):
            c3pre.append(It(f"buffer_load_dwordx4 {v(XR+8*r+4*m,4)}, v{vXO}, {s(SX,4)}, 0 offen offset:{256*r+32*m}", tag=("xr",r,m)))
    for i in range(4): c3pre.append(It(f"global_load_dwordx2 {pk(G2R+2*i)}, v44, s[16:17] offset:{16*i}", tag=("g2",i)))
    for i in range(4): c3pre.append(It(f"global_load_dwordx2 {pk(G2R+8+2*i)}, v44, s[18:19] offset:{16*i}", tag=("be2",i)))
    fills={0:[(t1_fill(1),0,63),(embpub,4,40)],
           1:[(t1_fill(2),0,63),(embld,10,12)],
           2:[(t1_fill(3),0,63),(embchk,20,21)],
           3:[(c3pre,0,18),(conv1_row_epi(0,False),20,36),(conv1_row_epi(1,False),38,54),(conv1_row_epi(2,False),56,72)]}
    conv_loop(P,0,fills)
    stamp(P)
    for it in conv1_row_epi(3,True): P.add(it)
    P(f"v_add_f32 v{vPub}, v40, v41")
    P(f"v_add_f32 v{vPub+2}, v42, v43")
    allreduce(P,[vPub,vPub+2],[60,61])
    P("s_waitcnt vmcnt(0)")
    publish(P,"g2",f"s{S_G2}",[])
    poll_issue(P,PD,f"s{S_G2}")
    stamp(P)
    for r in range(4):
        for m in range(2):
            b=XR+8*r+4*m
            P(f"v_permlane32_swap_b32 v{b}, v{b+2}")
            P(f"v_permlane32_swap_b32 v{b+1}, v{b+3}")
    for r in range(4):
        for i in range(4):
            for k in range(2):
                src=XR+8*r+2*i+k; d=ACC2+16*r+4*i+2*k
                P(f"v_lshlrev_b32 v{d}, 16, v{src}")
                P(f"v_and_b32 v{d+1}, s{SMASK}, v{src}")
    for k in range(0,64,2): P(f"v_pk_mul_f32 {pk(ACC2+k)}, {pk(ACC2+k)}, {s(SNL,2)}")
    for i in range(4):
        for d in range(2):
            P(f"v_lshlrev_b32 v{A2+4*i+2*d}, 16, v{G2R+2*i+d}")
            P(f"v_and_b32 v{A2+4*i+2*d+1}, s{SMASK}, v{G2R+2*i+d}")
    for i in range(4):
        for d in range(2):
            P(f"v_lshlrev_b32 v{B2+4*i+2*d}, 16, v{G2R+8+2*i+d}")
            P(f"v_and_b32 v{B2+4*i+2*d+1}, s{SMASK}, v{G2R+8+2*i+d}")
    for k in range(0,16,2): P(f"v_pk_mul_f32 {pk(B2+k)}, {pk(B2+k)}, {s(SNL,2)}")
    P(f"v_add_u32 v{vRD}, {TILE2}, v{vRD}")
    stamp(P)
    poll(P,"p2",PD,f"s{S_G2}")
    stamp(P)
    gather_reduce(P,"g2",PD)
    hso=["0",f"s{S256K}",f"s{S512K}",f"s{S768K}"]
    for i in range(4):
        for k in range(3):
            P.I(f"buffer_load_dwordx2 {pk(HR+6*i+2*k)}, v{vHG+k}, {s(SH,4)}, {hso[i]} offen sc1", tag=("halo",i,k))
    P(f"""
    v_mul_f32 v60, {fhex(INV_N)}, v{PD}          ; m'
    v_mul_f32 v61, {fhex(INV_N)}, v{PD+2}
    v_fma_f32 v61, -v60, v60, v61
    v_max_f32 v61, 0, v61
    v_mul_f32 v61, {fhex(LN2*LN2)}, v61
    v_add_f32 v61, {fhex(EPS)}, v61
    v_rsq_f32 v61, v61
    """)
    for k in range(16): P(f"v_mul_f32 v{A2+k}, v{A2+k}, v61")
    for k in range(16): P(f"v_fma_f32 v{B2+k}, -v60, v{A2+k}, v{B2+k}")
    for it in t2_interior(0,True)+t2_halo(0,True): P.add(it)
    P.I("s_barrier", needs=[("Tw",1,0)])
    P("s_waitcnt lgkmcnt(0)")
    stamp(P)
    fills={0:[(t2_interior(1)+t2_halo(1),0,63)],
           1:[(t2_interior(2)+t2_halo(2),0,63)],
           2:[(t2_interior(3)+t2_halo(3),0,63)],
           3:[(conv2_row_epi(0,False),20,36),(conv2_row_epi(1,False),38,54),(conv2_row_epi(2,False),56,72)]}
    conv_loop(P,1,fills)
    stamp(P)
    for it in conv2_row_epi(3,True): P.add(it)
    P(f"s_or_b32 s56, s2, s{sW}")
    P("s_cmp_lg_u32 s56, 0")
    P("s_cbranch_scc1 L_noepoch")
    P.raw(f"""
    s_mov_b32 s{sCnt}, 0x1000
    v_lshlrev_b32 v60, {RECSH}, v{vL}
    v_add_u32 v60, {WS_G1+G2_OFF}, v60
    v_add_u32 v63, {128<<RECSH}, v60
    s_mov_b32 s56, {64<<RECSH}
    L_ep_re:
    buffer_load_dwordx2 v[64:65], v60, {s(SWS,4)}, 0 offen sc1
    buffer_load_dwordx2 v[66:67], v60, {s(SWS,4)}, s56 offen sc1
    buffer_load_dwordx2 v[68:69], v63, {s(SWS,4)}, 0 offen sc1
    buffer_load_dwordx2 v[70:71], v63, {s(SWS,4)}, s56 offen sc1
    s_waitcnt vmcnt(0)
    v_xor_b32 v61, v{vTag}, v65
    v_xor_b32 v62, v{vTag}, v67
    v_or_b32 v61, v61, v62
    v_xor_b32 v62, v{vTag}, v69
    v_or_b32 v61, v61, v62
    v_xor_b32 v62, v{vTag}, v71
    v_or_b32 v61, v61, v62
    """)
    P.raw(f"""
    v_cmp_ne_u32 vcc, 0, v61
    s_cbranch_vccz L_ep_ok
    s_sub_u32 s{sCnt}, s{sCnt}, 1
    s_cbranch_scc0 L_ep_re
    L_ep_ok:
    v_mov_b32 v60, {OOB}
    v_cmp_eq_u32 vcc, 0, v{vL}
    v_cndmask_b32 v60, v60, 0, vcc
    buffer_store_dword v{vTag}, v60, {s(SWS,4)}, 0 offen sc1
    """)
    P("L_noepoch:")
    if PROF:
        stamp(P)
        if DBG:
            P(f"s_or_b32 s56, s2, s{sW}")
            P("s_cmp_lg_u32 s56, 0")
            P("s_cbranch_scc1 L_noprof")
            P("s_mov_b32 s48, s24"); P("s_mov_b32 s49, s25"); P("s_mov_b32 s50, 256"); P("s_mov_b32 s51, 0x20000")
            P(f"v_lshlrev_b32 v60, 2, v{vL}")
            P(f"buffer_store_dword v{vSR}, v60, s[48:51], 0 offen")
            P(f"v_add_u32 v60, 128, v60")
            P(f"v_cmp_gt_u32 vcc, 32, v{vL}")
            P(f"v_mov_b32 v61, {OOB}")
            P(f"v_cndmask_b32 v60, v61, v60, vcc")
            P("L_noprof:")
        else:
            P(f"s_add_u32 s48, s26, {WS_PROF}"); P("s_addc_u32 s49, s27, 0"); P("s_mov_b32 s50, 0x100000"); P("s_mov_b32 s51, 0x20000")
            P(f"s_lshl_b32 s56, s2, 2"); P(f"s_add_u32 s56, s56, s{sW}"); P("s_lshl_b32 s56, s56, 9")
            P(f"v_lshl_add_u32 v60, v{vL}, 2, s56")
            P(f"buffer_store_dword v{vSR}, v60, s[48:51], 0 offen")
            P(f"buffer_store_dword v{vSC}, v60, s[48:51], 0 offen offset:256")
    P("L_end:")
    P("s_endpgm")
    P("L_codeend:")
    return P

KD = f"""
.section .rodata,"a"
.p2align 6
.amdhsa_kernel {NAME}
  .amdhsa_next_free_vgpr {256+120}
  .amdhsa_next_free_sgpr 102
  .amdhsa_accum_offset 256
  .amdhsa_group_segment_fixed_size 0
  .amdhsa_kernarg_size 96
  .amdhsa_user_sgpr_count 2
  .amdhsa_user_sgpr_kernarg_segment_ptr 1
  .amdhsa_system_sgpr_workgroup_id_x 1
  .amdhsa_float_denorm_mode_32 3
.end_amdhsa_kernel
.text
"""
HEADER = open("standalone__adm_resblock__diffusion.s.ref").read().split("; Override launch")[0]

def build(path):
    _st[0]=0
    P=gen()
    L=resolve(P.items)
    L2=fix_hazards(L, report=("--rep" in sys.argv))
    out=HEADER+f"; @launch grid=(256,1,1) block=(256,1,1) lds={LDS_SIZE}\n"
    out+='.amdgcn_target "amdgcn-amd-amdhsa--gfx950"\n.text\n'
    out+="\n".join(L2)+"\n"+KD
    open(path,"w").write(out)
    print("lines",len(L2),"nops added",len(L2)-len(L))

if __name__=="__main__":
    PROF="--prof" in sys.argv or "--dbg" in sys.argv
    DBG="--dbg" in sys.argv
    build(sys.argv[1])
```
